```python
import torch

def _softmax(x, axis=-1):
    return torch.softmax(x, dim=axis)
def _gelu(x):
    return torch.nn.functional.gelu(x, approximate="tanh")
def _silu(x):
    return torch.nn.functional.silu(x)
def _sigmoid(x):
    return torch.sigmoid(x)
def _layernorm(x, axis=-1, eps=1e-5):
    m = x.mean(dim=axis, keepdim=True)
    v = x.var(dim=axis, keepdim=True, unbiased=False)
    return (x - m) / torch.sqrt(v + eps)
def _scatter_add(tgt, idx, src, axis=0):
    return tgt.clone().index_add_(axis, idx, src)
def _segment_sum(src, seg, n):
    out = torch.zeros((n,) + src.shape[1:], dtype=src.dtype)
    return out.index_add_(0, seg, src)
def _pad(x, pw):
    flat = tuple(v for pair in reversed(pw) for v in pair)
    return torch.nn.functional.pad(x, flat)

kernel_name = 'sequential_preLN__ssm_conv_s4__moe_arch_mod__prompt'

def setup_inputs():

    _w = (lambda a: (lambda t: t.to(torch.bfloat16) if t.is_floating_point() else t)(torch.as_tensor(a)))
    def _A_setup():
        B, L, D, N = 1, 2048, 576, 128
        A_re = -(lambda _x: torch.exp(torch.as_tensor(_x)))((lambda *s: torch.randn(*s, dtype=torch.bfloat16) * 1.6)(D, N))
        A_im = torch.pi * (lambda *s: torch.randn(*s, dtype=torch.bfloat16) * 0.2)(D, N)
        B_re = (lambda *s: torch.randn(*s, dtype=torch.bfloat16) * 0.2)(D, N)
        B_im = (lambda *s: torch.randn(*s, dtype=torch.bfloat16) * 0.2)(D, N)
        C_re = (lambda *s: torch.randn(*s, dtype=torch.bfloat16) * 0.2)(D, N)
        C_im = (lambda *s: torch.randn(*s, dtype=torch.bfloat16) * 0.2)(D, N)
        log_dt = (lambda *s: torch.randn(*s, dtype=torch.bfloat16) * 0.2)(D) * 0.5 - 4.0
        Dskip = (lambda *s: torch.randn(*s, dtype=torch.bfloat16) * 0.2)(D)
        return {
            "u": _w((lambda *s: torch.randn(*s, dtype=torch.bfloat16) * 0.05)(B, L, D)),
            "A_re": _w(A_re),
            "A_im": _w(A_im),
            "B_re": _w(B_re),
            "B_im": _w(B_im),
            "C_re": _w(C_re),
            "C_im": _w(C_im),
            "log_dt": _w(log_dt),
            "Dskip": _w(Dskip),
        }
    _A_in = _A_setup()

    def _B_setup():
        B, S, D, F, C = 1, 2048, 576, 4608, 8
        return {
            "x": _w((lambda *s: torch.randn(*s, dtype=torch.bfloat16) * 0.05)(B, S, D)),
            "w_r": _w((lambda *s: torch.randn(*s, dtype=torch.bfloat16) * 0.2)(D)),
            "w_gate": _w((lambda *s: torch.randn(*s, dtype=torch.bfloat16) * 0.2)(D, F)),
            "w_up": _w((lambda *s: torch.randn(*s, dtype=torch.bfloat16) * 0.2)(D, F)),
            "w_down": _w((lambda *s: torch.randn(*s, dtype=torch.bfloat16) * 0.2)(F, D)),
        }
    _B_in = _B_setup()

    return {
        "A_u": _A_in["u"],
        "A_A_re": _A_in["A_re"],
        "A_A_im": _A_in["A_im"],
        "A_B_re": _A_in["B_re"],
        "A_B_im": _A_in["B_im"],
        "A_C_re": _A_in["C_re"],
        "A_C_im": _A_in["C_im"],
        "A_log_dt": _A_in["log_dt"],
        "A_Dskip": _A_in["Dskip"],
        "B_x": _B_in["x"],
        "B_w_r": _B_in["w_r"],
        "B_w_gate": _B_in["w_gate"],
        "B_w_up": _B_in["w_up"],
        "B_w_down": _B_in["w_down"],
    }

def reference(A_u, A_A_re, A_A_im, A_B_re, A_B_im, A_C_re, A_C_im, A_log_dt, A_Dskip, B_x, B_w_r, B_w_gate, B_w_up, B_w_down):
    def _A_ref(u, A_re, A_im, B_re, B_im, C_re, C_im, log_dt, Dskip):
        Bsz, L, D = u.shape
        dt = torch.exp(log_dt)[:, None]
        A = A_re + 1j * A_im
        Bc = B_re + 1j * B_im
        Cc = C_re + 1j * C_im
        logdA = dt * A
        dB = dt * Bc
        l = (lambda x, dt: x.to(dt))(torch.arange(L), A_re.dtype)
        P = torch.exp(logdA[:, :, None] * l[None, None, :])
        K = torch.einsum("dn,dnl,dn->dl", Cc, P, dB).real
        L2 = 2 * L
        Kp = _pad(K, ((0, 0), (0, L)))
        up = (lambda x, *d: x.permute(*d))(u, 0, 2, 1)
        up = _pad(up, ((0, 0), (0, 0), (0, L)))
        Kf = (lambda x, axes=(-2,-1): torch.fft.rfft2(x.float(), dim=axes))(Kp[:, None, :], axes=(-2, -1))
        Uf = (lambda x, axes=(-2,-1): torch.fft.rfft2(x.float(), dim=axes))(up[:, :, None, :], axes=(-2, -1))
        Yf = Uf * Kf[None, :, :, :]
        y = (lambda x, s, axes=(-2,-1): torch.fft.irfft2(x, s=s, dim=axes).to(torch.bfloat16))(Yf, (1, L2), axes=(-2, -1))[:, :, 0, :L]
        y = (lambda x, *d: x.permute(*d))(y, 0, 2, 1) + u * Dskip[None, None, :]
        return y

    def _B_ref(x, w_r, w_gate, w_up, w_down):
        B, S, D = x.shape
        C = 8
        r = x @ w_r
        idx = torch.argsort(-r, axis=-1)[:, :C]
        idx_e = (lambda x, n, axis: torch.repeat_interleave(x, n, dim=axis))(idx.reshape(B, C, 1), D, axis=2)
        x_sel = (lambda x, i, axis: torch.take_along_dim(x, i, dim=axis))(x, idx_e, axis=1)
        g = _silu(x_sel @ w_gate)
        u = x_sel @ w_up
        y = (g * u) @ w_down
        r_sel = _sigmoid((lambda x, i, axis: torch.take_along_dim(x, i, dim=axis))(r, idx, axis=1))
        y = y * r_sel.reshape(B, C, 1)
        b_off = (torch.arange(B) * S).reshape(B, 1)
        flat_idx = (idx + b_off).reshape(B * C)
        zero = (x * 0.0).reshape(B * S, D)
        upd = _scatter_add(zero, flat_idx, y.reshape(B * C, D), axis=0)
        return x + upd.reshape(B, S, D)

    x = A_u
    h = x + _A_ref(_layernorm(x, axis=-1), A_A_re, A_A_im, A_B_re, A_B_im, A_C_re, A_C_im, A_log_dt, A_Dskip)
    h2 = h + _B_ref(_layernorm(h, axis=-1), B_w_r, B_w_gate, B_w_up, B_w_down)
    return h2
```

```python
import re

_REG_RE = re.compile(r'^(-|\|)?(abs\()?([vsa])(\d+|\[(\d+):(\d+)\])\)?\|?$')

TRANS = ('v_exp_f32', 'v_log_f32', 'v_rcp_f32', 'v_rsq_f32', 'v_sqrt_f32', 'v_sin_f32', 'v_cos_f32',
         'v_rcp_iflag_f32', 'v_exp_f16', 'v_log_f16', 'v_rcp_f16', 'v_rsq_f16', 'v_sqrt_f16')

def parse_reg(tok):
    tok = tok.strip()
    if tok in ('vcc',):
        return [('s', 106), ('s', 107)]
    if tok == 'vcc_lo':
        return [('s', 106)]
    if tok == 'vcc_hi':
        return [('s', 107)]
    if tok == 'exec':
        return [('s', 126), ('s', 127)]
    if tok == 'exec_lo':
        return [('s', 126)]
    if tok == 'exec_hi':
        return [('s', 127)]
    if tok == 'm0':
        return [('s', 124)]
    m = _REG_RE.match(tok)
    if not m:
        return []
    f = m.group(3)
    if m.group(5) is not None:
        return [(f, i) for i in range(int(m.group(5)), int(m.group(6)) + 1)]
    return [(f, int(m.group(4)))]

def split_ops(s):
    out, cur, depth = [], '', 0
    for ch in s:
        if ch in '[(':
            depth += 1
        if ch in '])':
            depth -= 1
        if ch == ',' and depth == 0:
            out.append(cur.strip()); cur = ''
        else:
            cur += ch
    if cur.strip():
        out.append(cur.strip())
    return out

MFMA_PASSES = {
    'v_mfma_f32_16x16x32_bf16': 4, 'v_mfma_f32_32x32x16_bf16': 8,
    'v_mfma_f32_16x16x32_f16': 4, 'v_mfma_f32_32x32x16_f16': 8,
    'v_mfma_f32_16x16x16_bf16': 4, 'v_mfma_f32_32x32x8_bf16': 8,
    'v_mfma_f32_16x16x4_f32': 8, 'v_mfma_f32_32x32x2_f32': 16,
    'v_mfma_f32_4x4x4_16b_bf16': 2,
}

class Ins:
    __slots__ = ('text', 'mn', 'dst', 'src', 'kind', 'slots', 'srcc', 'srcab', 'dpp', 'label', 'target', 'lanesel', 'data')
    def __init__(self, text):
        self.text = text
        self.label = None
        self.target = None
        self.dst = []; self.src = []; self.srcc = []; self.srcab = []; self.lanesel = []; self.data = []
        self.dpp = False
        self.slots = 1
        t = text.split(';')[0].strip()
        if t.endswith(':'):
            self.kind = 'label'; self.label = t[:-1]; self.mn = ''; self.slots = 0
            return
        if t == '' or t.startswith('.'):
            self.kind = 'dir'; self.mn = ''; self.slots = 0
            return
        parts = t.split(None, 1)
        mn = parts[0]
        self.mn = mn
        rest = parts[1] if len(parts) > 1 else ''
        ops = split_ops(rest)
        mods = ''
        if ops:
            last = ops[-1].split(None, 1)
            ops[-1] = last[0]
            mods = last[1] if len(last) > 1 else ''
        regs = [parse_reg(o) for o in ops]
        base = mn.replace('_e32', '').replace('_e64', '').replace('_dpp', '').replace('_sdwa', '')
        if mn.startswith('s_nop'):
            self.kind = 'nop'; self.slots = int(ops[0], 0) + 1
        elif mn.startswith('v_mfma'):
            self.kind = 'mfma'
            self.dst = regs[0]; self.srcab = regs[1] + regs[2]; self.srcc = regs[3]
            self.src = self.srcab + self.srcc
        elif mn.startswith('v_'):
            self.kind = 'trans' if base in TRANS else 'valu'
            if 'row_' in mods or 'quad_perm' in mods or 'wave_' in mods or mn.endswith('_dpp') or 'row_' in rest or 'quad_perm' in rest:
                self.dpp = True
            if base.startswith('v_cmpx'):
                self.dst = regs[0] + parse_reg('exec'); self.src = sum(regs[1:], [])
            elif base.startswith('v_cmp'):
                self.dst = regs[0]; self.src = sum(regs[1:], [])
            elif base in ('v_add_co_u32', 'v_sub_co_u32', 'v_subrev_co_u32', 'v_addc_co_u32', 'v_subb_co_u32',
                          'v_div_scale_f32', 'v_mad_u64_u32', 'v_mad_i64_i32'):
                self.dst = regs[0] + regs[1]; self.src = sum(regs[2:], [])
            elif base.startswith('v_permlane') and 'swap' in base:
                self.dst = regs[0] + regs[1]; self.src = regs[0] + regs[1]
            elif base in ('v_swap_b32',):
                self.dst = regs[0] + regs[1]; self.src = regs[0] + regs[1]
            elif base in ('v_readlane_b32',):
                self.dst = regs[0]; self.src = regs[1] + regs[2]; self.lanesel = regs[2]
            elif base in ('v_writelane_b32',):
                self.dst = regs[0]; self.src = regs[0] + regs[1] + regs[2]; self.lanesel = regs[2]
            elif base == 'v_nop':
                pass
            else:
                self.dst = regs[0]; self.src = sum(regs[1:], [])
                if base.startswith('v_fmac') or base.startswith('v_pk_fmac') or base.startswith('v_dot2c') \
                        or self.dpp or 'dst_unused:UNUSED_PRESERVE' in mods or base.endswith('_mixhi_f16') or base.endswith('_mixlo_f16'):
                    self.src = self.src + regs[0]
                if base == 'v_cndmask_b32' and len(ops) == 3:
                    self.src = self.src + parse_reg('vcc')
                if base == 'v_div_fmas_f32':
                    self.src = self.src + parse_reg('vcc')
        elif mn.startswith('ds_'):
            self.kind = 'ds'
            if mn.startswith('ds_read') or mn.startswith('ds_bpermute') or mn.startswith('ds_permute') or mn.startswith('ds_swizzle') or '_rtn' in mn:
                self.dst = regs[0]; self.src = sum(regs[1:], [])
                if 'd16' in mn: self.src = self.src + regs[0]
            else:
                self.src = sum(regs, [])
        elif mn.startswith('buffer_') or mn.startswith('global_') or mn.startswith('flat_'):
            self.kind = 'vmem'
            is_lds = re.search(r'\blds\b', mods) is not None or '_lds_' in mn
            if mn in ('buffer_wbl2', 'buffer_inv'):
                pass
            elif 'load' in mn and not is_lds:
                self.dst = regs[0]; self.src = sum(regs[1:], [])
                if 'd16' in mn: self.src = self.src + regs[0]
            elif 'atomic' in mn and re.search(r'\bsc0\b', mods) and mn.startswith('global_') and len(ops) == 4:
                self.dst = regs[0]; self.src = sum(regs[1:], [])
            elif 'atomic' in mn and re.search(r'\bsc0\b', mods) and mn.startswith('buffer_'):
                self.dst = regs[0]; self.src = sum(regs, [])
            else:
                self.src = sum(regs, [])
                if is_lds: self.src = self.src + parse_reg('m0')
                if 'store' in mn and ('x3' in mn or 'x4' in mn):
                    self.data = regs[0] if mn.startswith('buffer_') else regs[1]
        elif mn.startswith('s_'):
            self.kind = 'salu'
            if mn.startswith('s_cbranch') or mn == 's_branch':
                self.kind = 'branch'; self.target = ops[0]
            elif mn.startswith('s_cmp') or mn.startswith('s_bitcmp'):
                self.src = sum(regs, [])
            elif mn in ('s_waitcnt', 's_barrier', 's_endpgm', 's_setprio', 's_sleep', 's_sethalt', 's_setreg_imm32_b32', 's_sendmsg'):
                pass
            elif mn.startswith('s_load') or mn.startswith('s_buffer_load') or mn.startswith('s_memtime') or mn.startswith('s_memrealtime'):
                self.kind = 'smem'; self.dst = regs[0]; self.src = sum(regs[1:], [])
            elif 'saveexec' in mn:
                self.dst = regs[0] + parse_reg('exec'); self.src = sum(regs[1:], []) + parse_reg('exec')
            else:
                self.dst = regs[0] if regs else []; self.src = sum(regs[1:], [])
                if mn in ('s_addk_i32', 's_mulk_i32', 's_bitset1_b32', 's_bitset0_b32'): self.src = self.src + regs[0]
        else:
            raise ValueError('unknown instruction: ' + text)

def is_valu(i): return i.kind in ('valu', 'trans')

def need(prod, cons):
    n = 0
    pd = set(prod.dst)
    cs = set(cons.src); cd = set(cons.dst)
    if is_valu(prod):
        vd = {r for r in pd if r[0] in 'va'}
        sd = {r for r in pd if r[0] == 's'}
        if vd:
            if cons.kind == 'mfma' and vd & cs: n = max(n, 2)
            if is_valu(cons) and cons.dpp and vd & cs: n = max(n, 2)
            if is_valu(cons) and cons.mn.startswith('v_permlane') and vd & cs: n = max(n, 2)
            if is_valu(cons) and (cons.mn.startswith('v_readlane') or cons.mn.startswith('v_readfirstlane')) and vd & cs: n = max(n, 1)
            if prod.kind == 'trans' and cons.kind in ('valu', 'mfma') and vd & cs: n = max(n, 1)
            if prod.kind == 'trans' and cons.kind in ('ds', 'vmem') and vd & cs: n = max(n, 1)
            if ('sdwa' in prod.text or 'op_sel' in prod.text and not prod.mn.startswith('v_pk')) and is_valu(cons) and vd & (cs | cd): n = max(n, 1)
        if sd:
            if is_valu(cons) and sd & set(cons.lanesel): n = max(n, 4)
            if is_valu(cons) and sd & cs: n = max(n, 2)
            if cons.mn.startswith('v_div_fmas') and sd & cs: n = max(n, 4)
            if cons.kind == 'vmem' and sd & cs: n = max(n, 5)
            if cons.kind in ('salu', 'branch', 'smem') and sd & cs: n = max(n, 1)
            ex = {('s', 126), ('s', 127)}
            if sd & ex:
                if cons.kind == 'mfma': n = max(n, 4)
                if is_valu(cons) and cons.dpp: n = max(n, 5)
                if is_valu(cons) and (cons.mn.startswith('v_readlane') or cons.mn.startswith('v_readfirstlane') or cons.mn.startswith('v_writelane') or cons.mn.startswith('v_permlane')): n = max(n, 4)
            if sd & {('s', 106), ('s', 107)} and cons.kind == 'branch' and 'vcc' in cons.mn: n = max(n, 5)
            if sd & ex and cons.kind == 'branch' and 'exec' in cons.mn: n = max(n, 5)
    if prod.kind == 'mfma':
        p = MFMA_PASSES[prod.mn]
        sg = prod.mn.endswith('_f32') and 'x' in prod.mn and prod.mn.split('_')[-1] == 'f32' and prod.mn.count('_f32') == 2
        tab_ab = {2: 5, 4: 8, 8: 12, 16: 20} if not sg else {2: 4, 4: 6, 8: 10, 16: 18}
        tab_ov = {2: 4, 4: 6, 8: 10, 16: 18} if not sg else {2: 2, 4: 4, 8: 8, 16: 16}
        if cons.kind == 'mfma':
            if pd & set(cons.srcab): n = max(n, tab_ab[p])
            if pd & set(cons.srcc):
                if list(prod.dst) == list(cons.srcc) and MFMA_PASSES[cons.mn] == p:
                    n = max(n, 2 if p == 2 else 0)
                else:
                    n = max(n, tab_ov[p])
            elif pd & cd:
                n = max(n, tab_ov[p])
        elif cons.kind in ('valu', 'trans', 'ds', 'vmem'):
            if pd & (cs | cd): n = max(n, tab_ab[p])
        if is_valu(cons) and set(prod.srcc) & cd and not sg:
            n = max(n, {2: 1, 4: 3, 8: 7, 16: 15}[p])
    if prod.kind == 'vmem' and prod.data:
        if set(prod.data) & cd:
            n = max(n, 2 if is_valu(cons) else 1)
    if prod.kind == 'salu' and ('s', 124) in pd:
        if cons.kind == 'vmem' and ('s', 124) in cs: n = max(n, 1)
        if cons.mn.endswith('addtid_b32') or cons.mn.startswith('s_movrel') or cons.mn == 's_sendmsg': n = max(n, 1)
    return n

MAXD = 21

class Asm:
    def __init__(self):
        self.ins = []
        self.auto = True
    def raw(self, text):
        self.ins.append(Ins('.' if False else '; raw') if False else None)
    def __call__(self, text):
        for line in text.split('\n'):
            line = line.strip()
            if not line:
                continue
            if line.startswith(';'):
                i = Ins('')
                i.text = line
                self.ins.append(i)
                continue
            i = Ins(line)
            if self.auto and i.kind not in ('label', 'dir', 'nop'):
                pad = self._pad_needed(self.ins, i)
                if pad > 0:
                    while pad > 0:
                        k = min(pad, 16)
                        self.ins.append(Ins('s_nop %d' % (k - 1)))
                        pad -= k
            self.ins.append(i)
    @staticmethod
    def _pad_needed(hist, i):
        dist = 0
        pad = 0
        for p in reversed(hist):
            if p.kind in ('dir', 'label'):
                continue
            if p.kind == 'branch' and p.mn == 's_branch':
                break
            if p.mn == 's_endpgm':
                break
            n = need(p, i)
            if n - dist > pad:
                pad = n - dist
            dist += p.slots
            if dist >= MAXD:
                break
        return pad
    def check_branches(self):
        labels = {i.label: k for k, i in enumerate(self.ins) if i.kind == 'label'}
        for k, b in enumerate(self.ins):
            if b.kind != 'branch' or b.target not in labels:
                continue
            hist = self.ins[max(0, k - 40):k + 1]
            hist = [h for h in hist]
            fake = Ins('s_nop 0')
            hist = hist[:-1] + [fake]
            j = labels[b.target]
            d = 0
            cur = list(hist)
            while j < len(self.ins) and d < MAXD:
                c = self.ins[j]
                if c.kind not in ('label', 'dir'):
                    if c.kind != 'nop':
                        pad = self._pad_needed(cur, c)
                        if pad > 0:
                            raise RuntimeError('hazard across branch %s -> %s needs %d more' % (b.text, c.text, pad))
                    cur.append(c)
                    d += c.slots
                    if c.mn in ('s_branch', 's_endpgm'):
                        break
                j += 1
    def text(self):
        out = []
        for i in self.ins:
            if i.kind == 'label':
                out.append(i.text)
            else:
                out.append('    ' + i.text)
        return '\n'.join(out) + '\n'
```

```python
import sys, struct
from asmlib import Asm

NAME = 'sequential_preLN__ssm_conv_s4__moe_arch_mod__prompt'
L, D, N, F = 2048, 576, 128, 4608
XBYTES = L * D * 2
KA = dict(x=0, A_re=8, A_im=16, B_re=24, B_im=32, C_re=40, C_im=48, log_dt=56, Dskip=64, B_x=72, w_r=80,
          w_gate=88, w_up=96, w_down=104, out=112, dbg=120, ws=128)
WS_UT = 0
WS_KX = WS_UT + XBYTES
WS_YY = WS_KX + XBYTES
WS_Z = WS_YY + XBYTES
WS_H = WS_Z + XBYTES
WS_KEYS = WS_H + XBYTES
WS_SEL = WS_KEYS + 8192
WS_PART = WS_SEL + 256
NBLK = 288
PART_BYTES = NBLK * 8 * D * 4

def fbits(x):
    return '0x%08x' % struct.unpack('<I', struct.pack('<f', x))[0]

def srd(a, s, lo, nbytes, off=0):
    if off:
        a(f's_add_u32 s{s}, s{lo}, {off}')
        a(f's_addc_u32 s{s+1}, s{lo+1}, 0')
    else:
        a(f's_mov_b32 s{s}, s{lo}')
        a(f's_mov_b32 s{s+1}, s{lo+1}')
    a(f's_mov_b32 s{s+2}, {nbytes}')
    a(f's_mov_b32 s{s+3}, 0x00020000')

DPPM = 'row_mask:0xf bank_mask:0xf'
def allreduce32_add(a, v, t):
    a(f'v_add_f32_dpp v{v}, v{v}, v{v} quad_perm:[1,0,3,2] {DPPM}')
    a(f'v_add_f32_dpp v{v}, v{v}, v{v} quad_perm:[2,3,0,1] {DPPM}')
    a(f'v_add_f32_dpp v{v}, v{v}, v{v} row_half_mirror {DPPM}')
    a(f'v_add_f32_dpp v{v}, v{v}, v{v} row_mirror {DPPM}')
    a(f'v_mov_b32 v{t}, v{v}')
    a(f'v_permlane16_swap_b32 v{v}, v{t}')
    a(f'v_add_f32 v{v}, v{v}, v{t}')

def round_bf16_1(a, v):
    a(f'v_cvt_pk_bf16_f32 v{v}, v{v}, v{v}')
    a(f'v_lshlrev_b32 v{v}, 16, v{v}')

def layernorm18(a, X, T, P, sc_inv576='s40'):
    s, t, mean, rs = T, T + 1, T + 2, T + 3
    a(f'v_add_f32 v{s}, v{X}, v{X+1}')
    a(f'v_add_f32 v{t}, v{X+2}, v{X+3}')
    for i in range(4, 18, 2):
        a(f'v_add_f32 v{s}, v{s}, v{X+i}')
        a(f'v_add_f32 v{t}, v{t}, v{X+i+1}')
    a(f'v_add_f32 v{s}, v{s}, v{t}')
    allreduce32_add(a, s, t)
    a(f'v_mul_f32 v{mean}, {sc_inv576}, v{s}')
    a(f'v_sub_f32 v{T+4}, v{X}, v{mean}')
    a(f'v_sub_f32 v{T+5}, v{X+1}, v{mean}')
    a(f'v_mul_f32 v{s}, v{T+4}, v{T+4}')
    a(f'v_mul_f32 v{t}, v{T+5}, v{T+5}')
    for i in range(2, 18, 2):
        a(f'v_sub_f32 v{T+4}, v{X+i}, v{mean}')
        a(f'v_sub_f32 v{T+5}, v{X+i+1}, v{mean}')
        a(f'v_fmac_f32 v{s}, v{T+4}, v{T+4}')
        a(f'v_fmac_f32 v{t}, v{T+5}, v{T+5}')
    a(f'v_add_f32 v{s}, v{s}, v{t}')
    allreduce32_add(a, s, t)
    a(f'v_mul_f32 v{s}, {sc_inv576}, v{s}')
    round_bf16_1(a, s)
    round_bf16_1(a, mean)
    a(f'v_add_f32 v{s}, {fbits(1e-5)}, v{s}')
    round_bf16_1(a, s)
    a(f'v_sqrt_f32 v{s}, v{s}')
    round_bf16_1(a, s)
    a(f'v_rcp_f32 v{rs}, v{s}')
    for i in range(9):
        x0, x1 = X + 2 * i, X + 2 * i + 1
        a(f'v_sub_f32 v{x0}, v{x0}, v{mean}')
        a(f'v_sub_f32 v{x1}, v{x1}, v{mean}')
        a(f'v_cvt_pk_bf16_f32 v{x1}, v{x0}, v{x1}')
        a(f'v_lshlrev_b32 v{x0}, 16, v{x1}')
        a(f'v_and_b32 v{x1}, 0xffff0000, v{x1}')
        a(f'v_mul_f32 v{x0}, v{x0}, v{rs}')
        a(f'v_mul_f32 v{x1}, v{x1}, v{rs}')
        a(f'v_cvt_pk_bf16_f32 v{P+i}, v{x0}, v{x1}')

def kernel_header(a, name):
    a('.text')
    a(f'.globl {name}')
    a('.p2align 8')
    a(f'.type {name},@function')
    a(f'{name}:')

def kernel_desc(name, vgpr, sgpr=102):
    acc = (vgpr + 3) // 4 * 4
    return f'''.section .rodata,"a"
.p2align 6
.amdhsa_kernel {name}
  .amdhsa_next_free_vgpr {vgpr}
  .amdhsa_next_free_sgpr {sgpr}
  .amdhsa_accum_offset {acc}
  .amdhsa_group_segment_fixed_size 0
  .amdhsa_kernarg_size 136
  .amdhsa_user_sgpr_count 2
  .amdhsa_user_sgpr_kernarg_segment_ptr 1
  .amdhsa_system_sgpr_workgroup_id_x 1
.end_amdhsa_kernel
'''

RS = 544
KV_OFF = 64 * RS
K1_LDS = KV_OFF + 768 * 4

LOG2E = 1.4426950408889634
INV2PI = 0.15915494309189535

def split2(x):
    hi = struct.unpack('<f', struct.pack('<f', x))[0]
    lo = x - hi
    return hi, lo

def cexp(a, dre, dim, lr2, li, p, t0, t1, t2):
    hi, lo = split2(INV2PI)
    a(f's_mov_b32 s41, {fbits(float(p))}')
    a(f'v_mul_f32 v{t0}, s41, v{lr2}')
    a(f'v_exp_f32 v{t0}, v{t0}')
    a(f'v_mul_f32 v{t1}, s41, v{li}')
    a(f'v_mul_f32 v{t2}, s42, v{t1}')
    a(f'v_fma_f32 v{dre}, v{t1}, s42, -v{t2}')
    a(f'v_fmac_f32 v{dre}, s43, v{t1}')
    a(f'v_fract_f32 v{t2}, v{t2}')
    a(f'v_add_f32 v{t2}, v{t2}, v{dre}')
    a(f'v_cos_f32 v{dre}, v{t2}')
    a(f'v_sin_f32 v{dim}, v{t2}')
    a(f'v_mul_f32 v{dre}, v{dre}, v{t0}')
    a(f'v_mul_f32 v{dim}, v{dim}, v{t0}')

def cmul(a, dr, di, ar, ai, br, bi):
    a(f'v_mul_f32 v{dr}, v{ar}, v{br}')
    a(f'v_mul_f32 v{di}, v{ar}, v{bi}')
    a(f'v_fma_f32 v{dr}, -v{ai}, v{bi}, v{dr}')
    a(f'v_fmac_f32 v{di}, v{ai}, v{br}')

def put(a, row, re, im, tmp, addr, neg=False):
    a(f'v_cvt_pk_bf16_f32 v{tmp}, v{re}, {"-" if neg else ""}v{im}')
    a(f'ds_write_b32 v{addr}, v{tmp} offset:{row*RS}')

def gen_k1(a):
    name = 'prep_kernel'
    kernel_header(a, name)
    a('s_cmp_ge_u32 s2, 832')
    a('s_cbranch_scc1 K1_END')
    a(f's_load_dwordx2 s[4:5], s[0:1], {KA["ws"]}')
    a('s_cmp_ge_u32 s2, 256')
    a('s_cbranch_scc1 K1_KGEN')
    a(f's_load_dwordx2 s[6:7], s[0:1], {KA["x"]}')
    a(f's_mov_b32 s40, {fbits(1.0/576)}')
    a('v_lshrrev_b32 v1, 5, v0')
    a('v_and_b32 v2, 31, v0')
    a('s_lshl_b32 s3, s2, 3')
    a('v_add_u32 v3, s3, v1')
    a('s_movk_i32 s16, 1152')
    a('v_mul_lo_u32 v3, v3, s16')
    a('v_lshl_add_u32 v3, v2, 2, v3')
    a('s_waitcnt lgkmcnt(0)')
    srd(a, 8, 6, XBYTES)
    srd(a, 12, 4, XBYTES, WS_UT)
    for i in range(9):
        a(f'buffer_load_dword v{40+i}, v3, s[8:11], 0 offen offset:{i*128}')
    a('v_lshlrev_b32 v4, 5, v2')
    a('v_sub_u32 v5, 7, v1')
    a('v_lshl_add_u32 v4, v5, 1, v4')
    for i in range(9):
        a(f's_waitcnt vmcnt({8-i})')
        a(f'v_lshlrev_b32 v{10+2*i}, 16, v{40+i}')
        a(f'v_and_b32 v{11+2*i}, 0xffff0000, v{40+i}')
    layernorm18(a, 10, 30, 40)
    for i in range(9):
        a(f'ds_write_b16 v4, v{40+i} offset:{i*1024}')
        a(f'ds_write_b16_d16_hi v4, v{40+i} offset:{i*1024+16}')
    a('v_lshlrev_b32 v5, 4, v0')
    a('s_mul_i32 s3, s2, 9216')
    a('s_waitcnt lgkmcnt(0)')
    a('s_barrier')
    a('ds_read_b128 v[10:13], v5')
    a('ds_read_b128 v[14:17], v5 offset:4096')
    a('ds_read_b128 v[18:21], v5 offset:8192')
    a('s_waitcnt lgkmcnt(2)')
    a('buffer_store_dwordx4 v[10:13], v5, s[12:15], s3 offen')
    a('v_add_u32 v6, 4096, v5')
    a('s_waitcnt lgkmcnt(1)')
    a('buffer_store_dwordx4 v[14:17], v6, s[12:15], s3 offen')
    a('v_cmp_gt_u32 vcc, 64, v0')
    a('s_and_saveexec_b64 s[20:21], vcc')
    a('s_cbranch_execz K1_END')
    a('v_add_u32 v6, 8192, v5')
    a('s_waitcnt lgkmcnt(0)')
    a('buffer_store_dwordx4 v[18:21], v6, s[12:15], s3 offen')
    a('s_endpgm')
    a('K1_KGEN:')
    a(f's_load_dwordx4 s[8:11], s[0:1], {KA["A_re"]}')
    a(f's_load_dwordx4 s[12:15], s[0:1], {KA["B_re"]}')
    a(f's_load_dwordx4 s[16:19], s[0:1], {KA["C_re"]}')
    a(f's_load_dwordx2 s[20:21], s[0:1], {KA["log_dt"]}')
    a('s_sub_u32 s3, s2, 256')
    a('v_and_b32 v1, 127, v0')
    a('s_lshl_b32 s6, s3, 8')
    a('v_lshl_add_u32 v2, v1, 1, s6')
    a('s_lshl_b32 s7, s3, 1')
    a('v_mov_b32 v3, s7')
    hi, lo = split2(INV2PI)
    a(f's_mov_b32 s42, {fbits(hi)}')
    a(f's_mov_b32 s43, {fbits(lo)}')
    a('v_readfirstlane_b32 s44, v0')
    a('s_lshr_b32 s44, s44, 6')
    a('s_waitcnt lgkmcnt(0)')
    PB = D * N * 2
    srd(a, 48, 8, PB); srd(a, 52, 10, PB); srd(a, 56, 12, PB); srd(a, 60, 14, PB)
    srd(a, 64, 16, PB); srd(a, 68, 18, PB); srd(a, 72, 20, D * 2)
    a('buffer_load_ushort v10, v3, s[72:75], 0 offen')
    a('buffer_load_ushort v11, v2, s[48:51], 0 offen')
    a('buffer_load_ushort v12, v2, s[52:55], 0 offen')
    a('buffer_load_ushort v13, v2, s[56:59], 0 offen')
    a('buffer_load_ushort v14, v2, s[60:63], 0 offen')
    a('buffer_load_ushort v15, v2, s[64:67], 0 offen')
    a('buffer_load_ushort v16, v2, s[68:71], 0 offen')
    a('s_lshl_b32 s6, s3, 12')
    a(f's_add_u32 s6, s6, {WS_KX}')
    a('s_add_u32 s76, s4, s6')
    a('s_addc_u32 s77, s5, 0')
    a('s_movk_i32 s78, 4096')
    a('s_mov_b32 s79, 0x00020000')
    a('v_lshlrev_b32 v4, 2, v1')
    a('s_waitcnt vmcnt(6)')
    lh, ll = split2(LOG2E)
    a('v_lshlrev_b32 v10, 16, v10')
    a(f's_mov_b32 s45, {fbits(lh)}')
    a(f's_mov_b32 s46, {fbits(ll)}')
    a('v_mul_f32 v20, s45, v10')
    a('v_fma_f32 v21, v10, s45, -v20')
    a('v_fmac_f32 v21, s46, v10')
    a('v_exp_f32 v20, v20')
    a(f'v_mul_f32 v21, {fbits(0.6931471805599453)}, v21')
    a('v_fma_f32 v20, v20, v21, v20')
    round_bf16_1(a, 20)
    a('s_waitcnt vmcnt(0)')
    for r in range(11, 17):
        a(f'v_lshlrev_b32 v{r}, 16, v{r}')
    a('v_mul_f32 v11, v11, v20')
    a('v_mul_f32 v12, v12, v20')
    a('v_mul_f32 v13, v13, v20')
    a('v_mul_f32 v14, v14, v20')
    a('v_mul_f32 v11, s45, v11')
    cmul(a, 22, 23, 15, 16, 13, 14)
    cexp(a, 24, 25, 11, 12, 128, 30, 31, 32)
    a('s_cmp_ge_u32 s44, 2')
    a('s_cbranch_scc1 K1_ROLE1')
    cexp(a, 26, 27, 11, 12, 8, 30, 31, 32)
    cexp(a, 28, 29, 11, 12, 1024, 30, 31, 32)
    cmul(a, 34, 35, 22, 23, 28, 29)
    a('v_mov_b32 v36, 1.0')
    a('v_mov_b32 v37, 0')
    put(a, 48, 36, 37, 40, 4, True)
    put(a, 49, 26, 27, 41, 4, True)
    put(a, 32, 34, 35, 42, 4)
    fr, fi, gr, gi = 26, 27, 36, 37
    a('v_mov_b32 v44, v26')
    a('v_mov_b32 v45, v27')
    ar, ai, br, bi = 34, 35, 38, 39
    for j in range(2, 16):
        cmul(a, gr, gi, fr, fi, 44, 45)
        if j - 1 <= 8:
            cmul(a, br, bi, ar, ai, 24, 25)
        put(a, 48 + j, gr, gi, 40, 4, True)
        if j - 1 <= 8:
            put(a, 32 + j - 1, br, bi, 41, 4)
            ar, ai, br, bi = br, bi, ar, ai
        fr, fi, gr, gi = gr, gi, fr, fi
    a('s_branch K1_MFMA')
    a('K1_ROLE1:')
    cexp(a, 26, 27, 11, 12, 1, 30, 31, 32)
    cexp(a, 28, 29, 11, 12, 2, 30, 31, 32)
    cexp(a, 44, 45, 11, 12, 4, 30, 31, 32)
    a('v_mov_b32 v50, v22')
    a('v_mov_b32 v51, v23')
    for i in range(1, 8):
        cmul(a, 50 + 2 * i, 51 + 2 * i, 48 + 2 * i, 49 + 2 * i, 24, 25)
    def row_of(i, e):
        if i < 2: return e + 8 * i
        if i < 4: return 16 + e + 4 * (i - 2)
        return 24 + e + 2 * (i - 4)
    for i in range(8):
        put(a, row_of(i, 0), 50 + 2 * i, 51 + 2 * i, 40 + (i & 1), 4)
    for i in range(4, 8):
        cmul(a, 34, 35, 50 + 2 * i, 51 + 2 * i, 44, 45)
        put(a, row_of(i, 1), 34, 35, 40 + (i & 1), 4)
    cur = {i: (50 + 2 * i, 51 + 2 * i) for i in range(4)}
    alt = {i: (70 + 2 * i, 71 + 2 * i) for i in range(4)}
    for e in range(1, 8):
        for i in range(4):
            if i >= 2 and e > 3: continue
            m = (26, 27) if i < 2 else (28, 29)
            cmul(a, alt[i][0], alt[i][1], cur[i][0], cur[i][1], m[0], m[1])
        for i in range(4):
            if i >= 2 and e > 3: continue
            put(a, row_of(i, e), alt[i][0], alt[i][1], 40 + (i & 1), 4)
            cur[i], alt[i] = alt[i], cur[i]
    a('K1_MFMA:')
    a('v_and_b32 v5, 15, v0')
    a('v_bfe_u32 v6, v0, 4, 2')
    a(f's_movk_i32 s6, {RS}')
    a('v_mul_lo_u32 v7, v5, s6')
    a('v_lshl_add_u32 v7, v6, 4, v7')
    a(f's_mul_i32 s7, s44, {16*RS}')
    a('v_add_u32 v8, s7, v7')
    a('s_waitcnt lgkmcnt(0)')
    a('s_barrier')
    a('s_cmp_ge_u32 s44, 3')
    a('s_cbranch_scc1 K1_EXPAND')
    for kb in range(8):
        a(f'ds_read_b128 v[{16+8*kb}:{19+8*kb}], v8 offset:{kb*64}')
        a(f'ds_read_b128 v[{20+8*kb}:{23+8*kb}], v7 offset:{48*RS+kb*64}')
    for r in range(4):
        a(f'v_mov_b32 v{12+r}, 0')
    for kb in range(8):
        a(f's_waitcnt lgkmcnt({14-2*kb})')
        a(f'v_mfma_f32_16x16x32_bf16 v[12:15], v[{16+8*kb}:{19+8*kb}], v[{20+8*kb}:{23+8*kb}], v[12:15]')
    a('s_cmp_eq_u32 s44, 1')
    a('s_cbranch_scc1 K1_T1')
    a('s_cmp_eq_u32 s44, 2')
    a('s_cbranch_scc1 K1_T2')
    a('v_and_b32 v9, 1, v6')
    a('v_lshlrev_b32 v9, 4, v9')
    a('v_lshrrev_b32 v10, 1, v6')
    a('v_lshl_add_u32 v9, v10, 9, v9')
    a('v_lshl_add_u32 v9, v5, 5, v9')
    a('s_nop 4')
    a(f'ds_write_b128 v9, v[12:15] offset:{KV_OFF}')
    a('s_branch K1_EXPAND')
    a('K1_T1:')
    a('v_lshlrev_b32 v9, 8, v6')
    a('v_lshl_add_u32 v10, v5, 4, v9')
    a('v_lshl_add_u32 v11, v5, 3, v9')
    a('v_cmp_gt_u32 vcc, 2, v6')
    a('v_cndmask_b32 v9, v11, v10, vcc')
    a('v_mov_b32 v10, 128')
    a('v_cndmask_b32 v10, v10, 8, vcc')
    a('v_add_u32 v10, v10, v9')
    a(f'ds_write_b64 v9, v[12:13] offset:{KV_OFF+1024}')
    a(f'ds_write_b64 v10, v[14:15] offset:{KV_OFF+1024}')
    a('s_branch K1_EXPAND')
    a('K1_T2:')
    a('v_lshlrev_b32 v9, 8, v6')
    a('v_lshl_add_u32 v9, v5, 2, v9')
    a('s_nop 6')
    for r in range(4):
        a(f'ds_write_b32 v9, v{12+r} offset:{KV_OFF+2048+64*r}')
    a('K1_EXPAND:')
    a('v_lshlrev_b32 v20, 3, v0')
    a('v_cmp_gt_u32 vcc, 16, v0')
    for e in range(0, 8, 2):
        a(f'v_add_u32 v21, {e}, v20')
        a(f'v_add_u32 v22, {e+1}, v20')
        a(f'v_cvt_f32_u32 v23, v21')
        a(f'v_cvt_f32_u32 v24, v22')
        a(f'v_cvt_pk_bf16_f32 v23, v23, v24')
        a(f'v_lshrrev_b32 v24, 16, v23')
        a(f'v_and_b32 v23, 0xffff, v23')
        a(f'v_subrev_u32 v23, 17024, v23')
        a(f'v_subrev_u32 v24, 17024, v24')
        a(f'v_cndmask_b32 v23, v23, v21, vcc')
        a(f'v_cndmask_b32 v24, v24, v22, vcc')
        a(f'v_lshlrev_b32 v{30+e}, 2, v23')
        a(f'v_lshlrev_b32 v{31+e}, 2, v24')
    a('v_lshlrev_b32 v25, 4, v0')
    a('s_waitcnt lgkmcnt(0)')
    a('s_barrier')
    for e in range(8):
        a(f'ds_read_b32 v{40+e}, v{30+e} offset:{KV_OFF}')
    a('s_waitcnt lgkmcnt(0)')
    for e in range(4):
        a(f'v_cvt_pk_bf16_f32 v{48+e}, v{40+2*e}, v{41+2*e}')
    a('buffer_store_dwordx4 v[48:51], v25, s[76:79], 0 offen')
    a('K1_END:')
    a('s_endpgm')
    return name, 88

UR_BYTES = 4608
KH_OFF = UR_BYTES
KH_STRIDE = 4160
RED_OFF = UR_BYTES
K2_LDS = UR_BYTES + 24576

def gen_k2(a):
    name = 'conv_kernel'
    kernel_header(a, name)
    a(f's_cmp_ge_u32 s2, {D}')
    a('s_cbranch_scc1 K2_END')
    a(f's_load_dwordx2 s[4:5], s[0:1], {KA["ws"]}')
    a(f's_load_dwordx2 s[6:7], s[0:1], {KA["Dskip"]}')
    a('v_readfirstlane_b32 s44, v0')
    a('s_lshr_b32 s44, s44, 6')
    a('s_movk_i32 s16, 9216')
    a('v_mul_lo_u32 v1, v0, s16')
    a('s_lshl_b32 s3, s2, 4')
    a('v_lshlrev_b32 v2, 4, v0')
    a('s_lshl_b32 s17, s2, 1')
    a('v_mov_b32 v3, s17')
    a('s_waitcnt lgkmcnt(0)')
    srd(a, 8, 4, XBYTES, WS_UT)
    a('s_lshl_b32 s18, s2, 12')
    a(f's_add_u32 s18, s18, {WS_KX}')
    a('s_add_u32 s12, s4, s18')
    a('s_addc_u32 s13, s5, 0')
    a('s_movk_i32 s14, 4096')
    a('s_mov_b32 s15, 0x00020000')
    srd(a, 20, 4, XBYTES, WS_YY)
    srd(a, 24, 6, D * 2)
    a('buffer_load_dwordx4 v[8:11], v1, s[8:11], s3 offen')
    a('buffer_load_dwordx4 v[12:15], v2, s[12:15], 0 offen')
    a('buffer_load_dwordx4 v[16:19], v2, s[12:15], 0 offen offset:4')
    a('buffer_load_dword v20, v2, s[12:15], 0 offen offset:20')
    a('v_subrev_u32 v5, 16, v2')
    a('v_subrev_u32 v6, 12, v2')
    for r in range(24, 31):
        a(f'v_mov_b32 v{r}, 0')
    a('buffer_load_dword v31, v5, s[12:15], 0 offen')
    a('buffer_load_dword v32, v6, s[12:15], 0 offen')
    a('buffer_load_ushort v7, v3, s[24:27], 0 offen')
    for r in range(4):
        a(f'v_mov_b32 v{36+r}, 0')
    a('v_cmp_gt_u32 vcc, 32, v0')
    a('s_and_saveexec_b64 s[30:31], vcc')
    a('ds_write_b128 v2, v[36:39] offset:4096')
    a('s_mov_b64 exec, s[30:31]')
    a('v_sub_u32 v21, 4080, v2')
    a('s_waitcnt vmcnt(6)')
    a('ds_write_b128 v21, v[8:11]')
    def kcopies(W, X, Y, addr, off, T):
        a(f'ds_write_b128 v{addr}, v[{W}:{W+3}] offset:{off}')
        a(f'ds_write_b128 v{addr}, v[{X}:{X+3}] offset:{off+2*KH_STRIDE}')
        for k in range(4):
            a(f'v_alignbit_b32 v{T+k}, v{X+k}, v{W+k}, 16')
        for k in range(4):
            nx = X + k + 1 if k < 3 else Y
            a(f'v_alignbit_b32 v{T+4+k}, v{nx}, v{X+k}, 16')
        a(f'ds_write_b128 v{addr}, v[{T}:{T+3}] offset:{off+KH_STRIDE}')
        a(f'ds_write_b128 v{addr}, v[{T+4}:{T+7}] offset:{off+3*KH_STRIDE}')
    a('s_waitcnt vmcnt(3)')
    kcopies(12, 16, 20, 2, KH_OFF + 32, 40)
    a('v_cmp_gt_u32 vcc, 2, v0')
    a('s_waitcnt vmcnt(1)')
    a('s_and_saveexec_b64 s[30:31], vcc')
    kcopies(24, 28, 32, 2, KH_OFF, 48)
    a('s_mov_b64 exec, s[30:31]')
    a('v_and_b32 v4, 15, v0')
    a('v_bfe_u32 v5, v0, 4, 2')
    a('v_add_u32 v6, 1, v4')
    a('v_and_b32 v8, 3, v6')
    a('v_sub_u32 v6, v6, v8')
    a('v_lshl_add_u32 v6, v5, 3, v6')
    a('v_lshlrev_b32 v6, 1, v6')
    a(f's_movk_i32 s16, {KH_STRIDE}')
    a('v_mul_lo_u32 v8, v8, s16')
    a('v_add_u32 v6, v6, v8')
    a('s_lshl_b32 s17, s44, 6')
    a(f's_add_u32 s18, s17, {KH_OFF}')
    a('v_add_u32 v6, s18, v6')
    a('v_lshlrev_b32 v8, 5, v4')
    a('v_sub_u32 v8, 480, v8')
    a('v_lshl_add_u32 v8, v5, 4, v8')
    a('v_add_u32 v8, s17, v8')
    ACC = 12
    FA = [44, 108]
    FB = [76, 140]
    for r in range(32):
        a(f'v_mov_b32 v{ACC+r}, 0')
    a('s_waitcnt lgkmcnt(0)')
    a('s_barrier')
    def loads(cs):
        for q in range(8):
            a(f'ds_read_b64 v[{FA[cs]+4*q}:{FA[cs]+4*q+1}], v6 offset:{512*q+256*cs}')
            a(f'ds_read_b64 v[{FA[cs]+4*q+2}:{FA[cs]+4*q+3}], v6 offset:{512*q+256*cs+8}')
            a(f'ds_read_b128 v[{FB[cs]+4*q}:{FB[cs]+4*q+3}], v8 offset:{512*(7-q)+256*cs}')
    def mfmas(cs, base_out):
        for q in range(8):
            a(f's_waitcnt lgkmcnt({min(15, base_out + 3*(7-q))})')
            pairs = [(q, dl) for dl in range(q + 1)] + [(qa, q) for qa in range(q)]
            for qa, dl in pairs:
                if qa + dl > 7: continue
                J = qa + dl
                a(f'v_mfma_f32_16x16x32_bf16 v[{ACC+4*J}:{ACC+4*J+3}], v[{FA[cs]+4*qa}:{FA[cs]+4*qa+3}], v[{FB[cs]+4*dl}:{FB[cs]+4*dl+3}], v[{ACC+4*J}:{ACC+4*J+3}]')
    loads(0)
    mfmas(0, 0)
    loads(1)
    mfmas(1, 0)
    a('s_barrier')
    a('v_and_b32 v9, 63, v0')
    a('v_lshlrev_b32 v9, 4, v9')
    for w in range(4):
        if w:
            a(f'K2_RW{w}:')
        if w < 3:
            a(f's_cmp_lg_u32 s44, {w}')
            a(f's_cbranch_scc1 K2_RW{w+1}')
        for J in range(8):
            ow = J >> 1
            if ow == w: continue
            slot = (w - ow - 1) & 3
            a(f'ds_write_b128 v9, v[{ACC+4*J}:{ACC+4*J+3}] offset:{RED_OFF+(J*3+slot)*1024}')
        for r in range(8):
            a(f'v_mov_b32 v{44+r}, v{ACC+8*w+r}')
        if w < 3:
            a('s_branch K2_RD')
    a('K2_RD:')
    a(f's_mul_i32 s17, s44, {6*1024}')
    a('v_add_u32 v9, s17, v9')
    a('v_lshlrev_b32 v10, 5, v4')
    a('v_lshl_add_u32 v10, v5, 3, v10')
    a('s_lshl_b32 s17, s44, 10')
    a('v_add_u32 v10, s17, v10')
    a('v_sub_u32 v11, 3576, v10')
    a('s_waitcnt lgkmcnt(0)')
    a('s_barrier')
    for jj in range(2):
        for sl in range(3):
            a(f'ds_read_b128 v[{52+12*jj+4*sl}:{55+12*jj+4*sl}], v9 offset:{RED_OFF+(jj*3+sl)*1024}')
    a('ds_read_b64 v[80:81], v11 offset:512')
    a('ds_read_b64 v[82:83], v11')
    a('v_lshrrev_b32 v12, 1, v5')
    a('v_lshl_add_u32 v12, v4, 1, v12')
    a('s_lshl_b32 s17, s44, 6')
    a('v_add_u32 v12, s17, v12')
    a('s_movk_i32 s16, 9216')
    a('v_mul_lo_u32 v12, v12, s16')
    a('v_and_b32 v13, 1, v5')
    a('v_lshl_add_u32 v12, v13, 3, v12')
    a(f'v_add_u32 v13, {32*9216}, v12')
    a('s_waitcnt vmcnt(0)')
    a('v_lshlrev_b32 v7, 16, v7')
    a('s_waitcnt lgkmcnt(0)')
    for jj in range(2):
        A = 44 + 4 * jj
        for sl in range(3):
            for r in range(4):
                a(f'v_add_f32 v{A+r}, v{A+r}, v{52+12*jj+4*sl+r}')
        U = 80 + 2 * jj
        a(f'v_cvt_pk_bf16_f32 v{A}, v{A}, v{A+1}')
        a(f'v_cvt_pk_bf16_f32 v{A+2}, v{A+2}, v{A+3}')
        a(f'v_and_b32 v20, 0xffff0000, v{U+1}')
        a(f'v_lshlrev_b32 v21, 16, v{U+1}')
        a(f'v_and_b32 v22, 0xffff0000, v{U}')
        a(f'v_lshlrev_b32 v23, 16, v{U}')
        for r in range(4):
            a(f'v_mul_f32 v{20+r}, v{20+r}, v7')
        a('v_cvt_pk_bf16_f32 v20, v20, v21')
        a('v_cvt_pk_bf16_f32 v22, v22, v23')
        for p in range(2):
            a(f'v_lshlrev_b32 v24, 16, v{A+2*p}')
            a(f'v_and_b32 v25, 0xffff0000, v{A+2*p}')
            a(f'v_lshlrev_b32 v26, 16, v{20+2*p}')
            a(f'v_and_b32 v27, 0xffff0000, v{20+2*p}')
            a('v_add_f32 v24, v24, v26')
            a('v_add_f32 v25, v25, v27')
            a(f'v_cvt_pk_bf16_f32 v{28+2*jj+p}, v24, v25')
        a(f'buffer_store_dwordx2 v[{28+2*jj}:{29+2*jj}], v{12+jj}, s[20:23], s3 offen')
    a('K2_END:')
    a('s_endpgm')
    return name, 172

K3_LDS = 9216 + 64

def gen_k3(a):
    name = 'ln2_kernel'
    kernel_header(a, name)
    a('s_cmp_ge_u32 s2, 256')
    a('s_cbranch_scc1 K3_END')
    a(f's_load_dwordx2 s[4:5], s[0:1], {KA["ws"]}')
    a(f's_load_dwordx2 s[6:7], s[0:1], {KA["x"]}')
    a(f's_load_dwordx2 s[28:29], s[0:1], {KA["w_r"]}')
    a(f's_load_dwordx2 s[30:31], s[0:1], {KA["out"]}')
    a(f's_mov_b32 s40, {fbits(1.0/576)}')
    a('v_lshrrev_b32 v1, 5, v0')
    a('v_and_b32 v2, 31, v0')
    a('s_lshl_b32 s3, s2, 3')
    a('v_add_u32 v9, s3, v1')
    a('s_movk_i32 s16, 1152')
    a('v_mul_lo_u32 v3, v9, s16')
    a('v_lshl_add_u32 v3, v2, 2, v3')
    a('v_mul_lo_u32 v4, v1, s16')
    a('v_lshl_add_u32 v4, v2, 2, v4')
    a('v_lshlrev_b32 v5, 4, v0')
    a('v_lshlrev_b32 v6, 1, v0')
    a('v_lshlrev_b32 v7, 2, v2')
    a('s_mul_i32 s3, s2, 9216')
    a('s_waitcnt lgkmcnt(0)')
    srd(a, 8, 6, XBYTES)
    a(f's_add_u32 s17, s3, {WS_YY}')
    a('s_add_u32 s12, s4, s17')
    a('s_addc_u32 s13, s5, 0')
    a('s_movk_i32 s14, 9216')
    a('s_mov_b32 s15, 0x00020000')
    srd(a, 20, 4, XBYTES, WS_Z)
    srd(a, 24, 4, XBYTES, WS_H)
    srd(a, 32, 28, D * 2)
    srd(a, 36, 30, XBYTES)
    srd(a, 44, 4, 8192, WS_KEYS)
    a('v_add_u32 v8, 4096, v5')
    a('buffer_load_dwordx4 v[60:63], v5, s[12:15], 0 offen')
    a('buffer_load_dwordx4 v[64:67], v8, s[12:15], 0 offen')
    a('v_add_u32 v8, 8192, v5')
    a('buffer_load_dwordx4 v[68:71], v8, s[12:15], 0 offen')
    for i in range(9):
        a(f'buffer_load_dword v{40+i}, v3, s[8:11], 0 offen offset:{i*128}')
    for i in range(9):
        a(f'buffer_load_dword v{50+i}, v7, s[32:35], 0 offen offset:{i*128}')
    a('s_waitcnt vmcnt(20)')
    for k in range(4):
        a(f'ds_write_b16 v6, v{60+k} offset:{(2*k)*1152}')
        a(f'ds_write_b16_d16_hi v6, v{60+k} offset:{(2*k+1)*1152}')
    a('s_waitcnt vmcnt(19)')
    for k in range(4):
        a(f'ds_write_b16 v6, v{64+k} offset:{(2*k)*1152+512}')
        a(f'ds_write_b16_d16_hi v6, v{64+k} offset:{(2*k+1)*1152+512}')
    a('v_cmp_gt_u32 vcc, 64, v0')
    a('s_waitcnt vmcnt(18)')
    a('s_and_saveexec_b64 s[18:19], vcc')
    for k in range(4):
        a(f'ds_write_b16 v6, v{68+k} offset:{(2*k)*1152+1024}')
        a(f'ds_write_b16_d16_hi v6, v{68+k} offset:{(2*k+1)*1152+1024}')
    a('s_mov_b64 exec, s[18:19]')
    a('s_waitcnt lgkmcnt(0)')
    a('s_barrier')
    for i in range(9):
        a(f'ds_read_b32 v{60+i}, v4 offset:{i*128}')
    a('s_waitcnt vmcnt(9)')
    for i in range(9):
        a(f's_waitcnt lgkmcnt({8-i})')
        a(f'v_lshlrev_b32 v{10+2*i}, 16, v{40+i}')
        a(f'v_and_b32 v{11+2*i}, 0xffff0000, v{40+i}')
        a(f'v_lshlrev_b32 v30, 16, v{60+i}')
        a(f'v_and_b32 v31, 0xffff0000, v{60+i}')
        a(f'v_add_f32 v{10+2*i}, v{10+2*i}, v30')
        a(f'v_add_f32 v{11+2*i}, v{11+2*i}, v31')
        a(f'v_cvt_pk_bf16_f32 v{60+i}, v{10+2*i}, v{11+2*i}')
        a(f'v_lshlrev_b32 v{10+2*i}, 16, v{60+i}')
        a(f'v_and_b32 v{11+2*i}, 0xffff0000, v{60+i}')
        a(f'buffer_store_dword v{60+i}, v3, s[24:27], 0 offen offset:{i*128}')
    layernorm18(a, 10, 30, 40)
    a('s_waitcnt vmcnt(9)')
    a('v_mov_b32 v36, 0')
    a('v_mov_b32 v37, 0')
    for i in range(9):
        a(f'buffer_store_dword v{40+i}, v3, s[20:23], 0 offen offset:{i*128}')
        a(f'v_lshlrev_b32 v30, 16, v{40+i}')
        a(f'v_and_b32 v31, 0xffff0000, v{40+i}')
        a(f'v_lshlrev_b32 v32, 16, v{50+i}')
        a(f'v_and_b32 v33, 0xffff0000, v{50+i}')
        a('v_fmac_f32 v36, v30, v32')
        a('v_fmac_f32 v37, v31, v33')
        a(f'v_lshlrev_b32 v32, 16, v{60+i}')
        a(f'v_and_b32 v33, 0xffff0000, v{60+i}')
        a('v_add_f32 v30, v30, v32')
        a('v_add_f32 v31, v31, v33')
        a(f'v_cvt_pk_bf16_f32 v{70+i}, v30, v31')
        a(f'buffer_store_dword v{70+i}, v3, s[36:39], 0 offen offset:{i*128}')
    a('v_add_f32 v36, v36, v37')
    allreduce32_add(a, 36, 37)
    a('v_cvt_pk_bf16_f32 v36, v36, v36')
    a('v_and_b32 v36, 0xffff0000, v36')
    a('v_ashrrev_i32 v37, 31, v36')
    a('v_or_b32 v37, 0x80000000, v37')
    a('v_xor_b32 v36, v36, v37')
    a('v_and_b32 v36, 0xffff0000, v36')
    a('v_sub_u32 v37, 2047, v9')
    a('v_or_b32 v36, v36, v37')
    a('v_lshlrev_b32 v37, 2, v9')
    a('v_cmp_eq_u32 vcc, 0, v2')
    a('s_and_saveexec_b64 s[18:19], vcc')
    a('buffer_store_dword v36, v37, s[44:47], 0 offen')
    a('K3_END:')
    a('s_endpgm')
    return name, 80

GU_OFF = 0
WD_OFF = 4 * 9216
EX_OFF = WD_OFF + 4 * 5120
K4_LDS = EX_OFF + 4096 + 512

SORT8 = [(0,1),(2,3),(4,5),(6,7),(0,2),(1,3),(4,6),(5,7),(1,2),(5,6),(0,4),(3,7),(1,5),(2,6),(1,4),(3,6),(2,4),(3,5),(3,4)]

def ce(a, regs, i, j, tmp):
    x, y = regs[i], regs[j]
    t = tmp[0]
    a(f'v_max_u32 v{t}, v{x}, v{y}')
    a(f'v_min_u32 v{y}, v{x}, v{y}')
    regs[i] = t
    tmp[0] = x

def merge_level(a, regs, alt, dpp, tmp, final=False):
    for i in range(8):
        a(f'v_max_u32_dpp v{alt[i]}, v{regs[7-i]}, v{regs[i]} {dpp} {DPPM}')
    for i in range(8):
        regs[i], alt[i] = alt[i], regs[i]
    if final: return
    for st in (4, 2, 1):
        for i in range(8):
            if i & st == 0:
                ce(a, regs, i, i + st, tmp)

def top8(a, K0, EXOFF, vtid_lane_row_addr):
    regs = list(range(K0, K0 + 8))
    alt = list(range(K0 + 8, K0 + 16))
    tmp = [K0 + 16]
    for i, j in SORT8:
        ce(a, regs, i, j, tmp)
    lv = ['quad_perm:[1,0,3,2]', 'quad_perm:[2,3,0,1]', 'row_half_mirror', 'row_mirror']
    for dpp in lv:
        merge_level(a, regs, alt, dpp, tmp)
    W = K0 + 20
    for i in range(8):
        a(f'v_mov_b32 v{W+i}, v{regs[i]}')
    a(f'v_lshrrev_b32 v{K0+17}, 4, v0')
    a(f'v_lshlrev_b32 v{K0+17}, 5, v{K0+17}')
    a(f'v_and_b32 v{K0+18}, 15, v0')
    a(f'v_cmp_eq_u32 vcc, 0, v{K0+18}')
    a(f'v_lshlrev_b32 v{K0+18}, 5, v{K0+18}')
    a('s_and_saveexec_b64 s[18:19], vcc')
    a(f'ds_write_b128 v{K0+17}, v[{W}:{W+3}] offset:{EXOFF}')
    a(f'ds_write_b128 v{K0+17}, v[{W+4}:{W+7}] offset:{EXOFF+16}')
    a('s_mov_b64 exec, s[18:19]')
    a('s_waitcnt lgkmcnt(0)')
    a('s_barrier')
    a(f'ds_read_b128 v[{K0}:{K0+3}], v{K0+18} offset:{EXOFF}')
    a(f'ds_read_b128 v[{K0+4}:{K0+7}], v{K0+18} offset:{EXOFF+16}')
    a('s_waitcnt lgkmcnt(0)')
    regs = list(range(K0, K0 + 8))
    alt = list(range(K0 + 8, K0 + 16))
    tmp = [K0 + 16]
    for n, dpp in enumerate(lv):
        merge_level(a, regs, alt, dpp, tmp)
    return regs

def gen_k4(a):
    name = 'ffn_kernel'
    kernel_header(a, name)
    a(f's_cmp_ge_u32 s2, {NBLK}')
    a('s_cbranch_scc1 K4_END')
    a(f's_load_dwordx2 s[4:5], s[0:1], {KA["ws"]}')
    a(f's_load_dwordx4 s[8:11], s[0:1], {KA["w_gate"]}')
    a(f's_load_dwordx2 s[12:13], s[0:1], {KA["w_down"]}')
    a('v_readfirstlane_b32 s44, v0')
    a('s_lshr_b32 s44, s44, 6')
    a('s_and_b32 s3, s2, 0xffe0')
    a('s_and_b32 s16, s2, 7')
    a('s_lshl_b32 s16, s16, 2')
    a('s_add_u32 s3, s3, s16')
    a('s_bfe_u32 s16, s2, 0x20003')
    a('s_add_u32 s3, s3, s16')
    a('v_lshlrev_b32 v1, 5, v0')
    a('v_and_b32 v2, 63, v0')
    a('s_waitcnt lgkmcnt(0)')
    srd(a, 20, 4, 8192, WS_KEYS)
    a('buffer_load_dwordx4 v[40:43], v1, s[20:23], 0 offen')
    a('buffer_load_dwordx4 v[44:47], v1, s[20:23], 0 offen offset:16')
    a('s_and_b32 s16, s44, 1')
    a('s_cmp_eq_u32 s16, 1')
    a('s_cselect_b32 s24, s10, s8')
    a('s_cselect_b32 s25, s11, s9')
    a(f's_mov_b32 s26, {D*F*2}')
    a('s_mov_b32 s27, 0x00020000')
    srd(a, 28, 12, D * F * 2)
    srd(a, 32, 4, XBYTES, WS_Z)
    srd(a, 36, 4, PART_BYTES, WS_PART)
    srd(a, 48, 4, 256, WS_SEL)
    a('v_lshrrev_b32 v3, 1, v2')
    a('s_movk_i32 s16, 9216')
    a('v_mul_lo_u32 v3, v3, s16')
    a('v_and_b32 v4, 1, v2')
    a('v_lshl_add_u32 v3, v4, 4, v3')
    a('s_lshr_b32 s17, s44, 1')
    a(f's_mul_i32 s18, s17, {288*9216}')
    a('s_lshl_b32 s19, s3, 5')
    a('s_add_u32 s18, s18, s19')
    a('s_mul_i32 s45, s44, 9216')
    for i in range(9):
        a(f's_add_u32 m0, s45, {GU_OFF + i*1024}')
        a(f'buffer_load_dwordx4 v3, s[24:27], s18 offen lds')
        if i < 8:
            a(f's_add_u32 s18, s18, {32*9216}')
    a('v_bfe_u32 v5, v2, 1, 4')
    a('s_movk_i32 s16, 1152')
    a('v_mul_lo_u32 v5, v5, s16')
    a('v_lshl_add_u32 v5, v4, 4, v5')
    a('v_lshrrev_b32 v6, 5, v2')
    a('v_lshl_add_u32 v5, v6, 5, v5')
    a(f's_mul_i32 s18, s3, {16*1152}')
    a(f's_mul_i32 s19, s44, {9*32}')
    a('s_add_u32 s18, s18, s19')
    a('s_mul_i32 s46, s44, 5120')
    for i in range(5):
        a(f's_add_u32 m0, s46, {WD_OFF + i*1024}')
        if i == 4:
            a('s_mov_b32 exec_hi, 0')
        a(f'buffer_load_dwordx4 v5, s[28:31], s18 offen lds')
        if i < 4:
            a('s_add_u32 s18, s18, 64')
    a('s_mov_b64 exec, -1')
    a('s_waitcnt vmcnt(14)')
    regs = top8(a, 40, EX_OFF + 4096, None)
    a(f'v_mov_b32 v7, v{regs[0]}')
    for i in range(1, 8):
        m = 0x01010101 << i
        a(f's_mov_b32 s52, 0x{m:08x}')
        a(f's_mov_b32 s53, 0x{m:08x}')
        a(f'v_cndmask_b32 v7, v7, v{regs[i]}, s[52:53]')
    a('s_or_b32 s16, s2, s44')
    a('s_cmp_lg_u32 s16, 0')
    a('s_cbranch_scc1 K4_NOSEL')
    a('v_lshlrev_b32 v8, 2, v2')
    a('s_mov_b64 exec, 0xff')
    a('buffer_store_dword v7, v8, s[48:51], 0 offen')
    a('s_mov_b64 exec, -1')
    a('K4_NOSEL:')
    a('v_and_b32 v7, 0x7ff, v7')
    a('v_sub_u32 v7, 2047, v7')
    a('s_movk_i32 s16, 1152')
    a('v_mul_lo_u32 v7, v7, s16')
    a('v_lshrrev_b32 v8, 4, v2')
    a('v_lshl_add_u32 v7, v8, 3, v7')
    a(f's_mul_i32 s18, s17, {288*2}')
    ZF = 72
    for kb in range(9):
        a(f'buffer_load_dwordx2 v[{ZF+4*kb}:{ZF+4*kb+1}], v7, s[32:35], s18 offen offset:{64*kb}')
        a(f'buffer_load_dwordx2 v[{ZF+4*kb+2}:{ZF+4*kb+3}], v7, s[32:35], s18 offen offset:{64*kb+32}')
    a('v_lshlrev_b32 v9, 3, v2')
    a('v_add_u32 v10, s45, v9')
    a('v_add_u32 v11, s46, v9')
    WF = 112
    a('s_waitcnt vmcnt(18)')
    for kb in range(9):
        a(f'ds_read_b64_tr_b16 v[{WF+4*kb}:{WF+4*kb+1}], v10 offset:{GU_OFF+kb*1024}')
        a(f'ds_read_b64_tr_b16 v[{WF+4*kb+2}:{WF+4*kb+3}], v10 offset:{GU_OFF+kb*1024+512}')
    for r in range(4):
        a(f'v_mov_b32 v{12+r}, 0')
    a('s_waitcnt lgkmcnt(0)')
    for kb in range(9):
        a(f's_waitcnt vmcnt({16-2*kb})')
        a(f'v_mfma_f32_16x16x32_bf16 v[12:15], v[{WF+4*kb}:{WF+4*kb+3}], v[{ZF+4*kb}:{ZF+4*kb+3}], v[12:15]')
    DF = 40
    for nb in range(9):
        a(f'ds_read_b64_tr_b16 v[{DF+2*nb}:{DF+2*nb+1}], v11 offset:{WD_OFF+nb*512}')
    a('v_lshlrev_b32 v16, 4, v0')
    a('v_lshlrev_b32 v17, 4, v2')
    a(f'ds_write_b128 v16, v[12:15] offset:{EX_OFF}')
    a('s_waitcnt lgkmcnt(0)')
    a('s_barrier')
    for w in range(4):
        a(f'ds_read_b128 v[{20+4*w}:{23+4*w}], v17 offset:{EX_OFF+w*1024}')
    a('s_waitcnt lgkmcnt(0)')
    for r in range(4):
        a(f'v_add_f32 v{20+r}, v{20+r}, v{28+r}')
        a(f'v_add_f32 v{24+r}, v{24+r}, v{32+r}')
    for r in range(0, 4, 2):
        a(f'v_cvt_pk_bf16_f32 v{21+r}, v{20+r}, v{21+r}')
        a(f'v_cvt_pk_bf16_f32 v{25+r}, v{24+r}, v{25+r}')
        a(f'v_lshlrev_b32 v{20+r}, 16, v{21+r}')
        a(f'v_and_b32 v{21+r}, 0xffff0000, v{21+r}')
        a(f'v_lshlrev_b32 v{24+r}, 16, v{25+r}')
        a(f'v_and_b32 v{25+r}, 0xffff0000, v{25+r}')
    for r in range(4):
        a(f'v_mul_f32 v{28+r}, {fbits(-LOG2E)}, v{20+r}')
    for r in range(4):
        a(f'v_exp_f32 v{28+r}, v{28+r}')
    for r in range(4):
        a(f'v_add_f32 v{28+r}, 1.0, v{28+r}')
    for r in range(4):
        a(f'v_rcp_f32 v{28+r}, v{28+r}')
    for r in range(4):
        a(f'v_mul_f32 v{20+r}, v{20+r}, v{28+r}')
    for r in range(0, 4, 2):
        a(f'v_cvt_pk_bf16_f32 v{21+r}, v{20+r}, v{21+r}')
        a(f'v_lshlrev_b32 v{20+r}, 16, v{21+r}')
        a(f'v_and_b32 v{21+r}, 0xffff0000, v{21+r}')
    for r in range(4):
        a(f'v_mul_f32 v{20+r}, v{20+r}, v{24+r}')
    a('v_cvt_pk_bf16_f32 v28, v20, v21')
    a('v_cvt_pk_bf16_f32 v29, v22, v23')
    a('v_and_b32 v18, 15, v2')
    a('s_movk_i32 s16, 2304')
    a('v_mul_lo_u32 v19, v18, s16')
    a('v_lshl_add_u32 v19, v8, 4, v19')
    a(f's_mul_i32 s18, s3, {8*2304}')
    a(f's_mul_i32 s19, s44, {9*64}')
    a('s_add_u32 s18, s18, s19')
    OUT = 72
    for nb in range(9):
        a(f'v_mfma_f32_16x16x16_bf16 v[{OUT+4*nb}:{OUT+4*nb+3}], v[{DF+2*nb}:{DF+2*nb+1}], v[28:29], 0')
    a('v_cmp_gt_u32 vcc, 8, v18')
    a('s_and_saveexec_b64 s[18+34:19+34], vcc'.replace('18+34', '52').replace('19+34', '53'))
    for nb in range(9):
        a(f'buffer_store_dwordx4 v[{OUT+4*nb}:{OUT+4*nb+3}], v19, s[36:39], s18 offen offset:{64*nb}')
    a('K4_END:')
    a('s_endpgm')
    return name, 152

K5_LDS = 2048

def gen_k5(a):
    name = 'fin_kernel'
    kernel_header(a, name)
    a(f's_cmp_ge_u32 s2, 288')
    a('s_cbranch_scc1 K5_END')
    a(f's_load_dwordx2 s[4:5], s[0:1], {KA["ws"]}')
    a(f's_load_dwordx2 s[6:7], s[0:1], {KA["out"]}')
    a(f's_mul_hi_u32 s16, s2, {(2**32 + 35)//36}')
    a('s_mul_i32 s17, s16, 36')
    a('s_sub_u32 s17, s2, s17')
    a('v_lshrrev_b32 v1, 2, v0')
    a('v_and_b32 v2, 3, v0')
    a(f's_mov_b32 s18, {9*8*2304}')
    a('v_mul_lo_u32 v3, v1, s18')
    a('v_lshl_add_u32 v3, v2, 4, v3')
    a('s_lshl_b32 s19, s2, 6')
    a('s_lshl_b32 s20, s16, 2')
    a('v_mov_b32 v4, s20')
    a('s_waitcnt lgkmcnt(0)')
    srd(a, 8, 4, PART_BYTES, WS_PART)
    srd(a, 12, 4, 256, WS_SEL)
    srd(a, 24, 4, XBYTES, WS_Z)
    srd(a, 28, 4, XBYTES, WS_H)
    srd(a, 32, 6, XBYTES)
    a('buffer_load_dword v5, v4, s[12:15], 0 offen')
    for i in range(9):
        a(f'buffer_load_dwordx4 v[{12+4*i}:{15+4*i}], v3, s[8:11], s19 offen')
        if i < 8:
            a(f's_add_u32 s19, s19, {8*2304}')
    a('s_waitcnt vmcnt(9)')
    a('v_and_b32 v6, 0x7ff, v5')
    a('v_sub_u32 v6, 2047, v6')
    a('s_movk_i32 s18, 1152')
    a('v_mul_lo_u32 v6, v6, s18')
    a('v_and_b32 v7, 15, v0')
    a('v_lshl_add_u32 v6, v7, 1, v6')
    a('s_lshl_b32 s20, s17, 5')
    a('buffer_load_ushort v8, v6, s[24:27], s20 offen')
    a('buffer_load_ushort v9, v6, s[28:31], s20 offen')
    a('v_and_b32 v5, 0xffff0000, v5')
    a('v_ashrrev_i32 v10, 31, v5')
    a('v_not_b32 v10, v10')
    a('v_or_b32 v10, 0x80000000, v10')
    a('v_xor_b32 v5, v5, v10')
    a('v_and_b32 v5, 0xffff0000, v5')
    a(f'v_mul_f32 v5, {fbits(-LOG2E)}, v5')
    a('v_exp_f32 v5, v5')
    a('v_add_f32 v5, 1.0, v5')
    a('v_rcp_f32 v5, v5')
    round_bf16_1(a, 5)
    for i in range(1, 9):
        a(f's_waitcnt vmcnt({2+8-i})')
        for r in range(4):
            a(f'v_add_f32 v{12+r}, v{12+r}, v{12+4*i+r}')
    a('v_lshlrev_b32 v10, 4, v0')
    a('ds_write_b128 v10, v[12:15]')
    a('v_lshlrev_b32 v11, 2, v7')
    a('s_waitcnt lgkmcnt(0)')
    a('s_barrier')
    a('v_cmp_gt_u32 vcc, 16, v0')
    a('s_and_saveexec_b64 s[36:37], vcc')
    a('s_cbranch_execz K5_END')
    for g in range(32):
        a(f'ds_read_b32 v{12+g}, v11 offset:{64*g}')
        if g % 8 == 7:
            a('s_waitcnt lgkmcnt(0)')
    for st in (16, 8, 4, 2, 1):
        for g in range(st):
            a(f'v_add_f32 v{12+g}, v{12+g}, v{12+g+st}')
    round_bf16_1(a, 12)
    a('v_mul_f32 v12, v12, v5')
    round_bf16_1(a, 12)
    a('s_waitcnt vmcnt(0)')
    a('v_lshlrev_b32 v8, 16, v8')
    a('v_lshlrev_b32 v9, 16, v9')
    a('v_add_f32 v12, v12, v8')
    round_bf16_1(a, 12)
    a('v_add_f32 v12, v12, v9')
    a('v_cvt_pk_bf16_f32 v12, v12, v12')
    a('buffer_store_short v12, v6, s[32:35], s20 offen')
    a('K5_END:')
    a('s_endpgm')
    return name, 48

def main():
    extra_noop = int(sys.argv[2]) if len(sys.argv) > 2 else 0
    ref = open(f'/code/{NAME}.s.ref').read().split('\n')
    head = [l for l in ref if l.startswith(';') and '@launch' not in l and 'Override launch' not in l and 'grid=ceil' not in l]
    a = Asm()
    kernels = []
    for g, grid, block, lds in [(gen_k1, 832, 256, K1_LDS), (gen_k2, D, 256, K2_LDS), (gen_k3, 256, 256, K3_LDS),
                                (gen_k4, NBLK, 256, K4_LDS), (gen_k5, 288, 128, K5_LDS)]:
        name, vg = g(a)
        kernels.append((name, vg, grid, block, lds))
    if extra_noop:
        kernel_header(a, 'noop_kernel')
        a('s_endpgm')
    a.check_branches()
    out = head[:]
    for name, vg, grid, block, lds in kernels:
        out.append(f'; @launch kernel={name} grid=({grid},1,1) block=({block},1,1) lds={lds}')
    for i in range(extra_noop):
        out.append(f'; @launch kernel=noop_kernel grid=(256,1,1) block=(256,1,1) lds=0')
    out.append('.amdgcn_target "amdgcn-amd-amdhsa--gfx950"')
    txt = '\n'.join(out) + '\n' + a.text()
    for name, vg, grid, block, lds in kernels:
        txt += kernel_desc(name, vg)
    if extra_noop:
        txt += kernel_desc('noop_kernel', 8)
    path = sys.argv[1] if len(sys.argv) > 1 else f'/code/{NAME}.s'
    open(path, 'w').write(txt)
    print('wrote', path, len(txt))

main()
```

```python
import sys, struct
from asmlib import Asm

NAME = 'sequential_preLN__ssm_conv_s4__moe_arch_mod__prompt'
L, D, N, F = 2048, 576, 128, 4608
XBYTES = L * D * 2
PROF = '--prof' in sys.argv
OPT = dict(d_yy=16, d_keys=12, d_part=20, d_nc=40, spin=4000)
for arg in sys.argv[1:]:
    if '=' in arg:
        k, v = arg.split('=')
        OPT[k] = int(v)

WS_EPOCH = 0
WS_STATS = 4096
WS_KEYS = 32768
WS_H = 49152
WS_YY = 65536
WS_Z = WS_YY + XBYTES
WS_PART = WS_Z + XBYTES
WS_PROF = 64 << 20
NCONV, NFFN = 192, 48

RS = 544
EF = lambda ch: ch * 64 * RS
KV0 = 3 * 64 * RS
KVS = 3072
U0 = KV0 + 3 * KVS
US = 4608
KHS = 4160
KH = lambda ch: ch * 4 * KHS
RED = 3 * 4 * KHS
STG = RED + 12 * 2048
WD0 = 0
GP0 = 110592
HID = GP0 + 9 * 4 * 512
HIDS = 208
YT = 131072
MISC = YT + 9216
M_CNT = MISC
M_ZERO = MISC + 16
M_GRAN = MISC + 64
M_EX = MISC + 256
M_TOP = MISC + 1280
M_FIN = MISC + 1792
LDS_BYTES = 143360

LOG2E = 1.4426950408889634
INV2PI = 0.15915494309189535
DPPM = 'row_mask:0xf bank_mask:0xf'

def fbits(x):
    return '0x%08x' % struct.unpack('<I', struct.pack('<f', x))[0]

def split2(x):
    hi = struct.unpack('<f', struct.pack('<f', x))[0]
    return hi, x - hi

a = Asm()
_st = [0]
def stamp(i):
    if PROF:
        a(f's_memrealtime s[{76+2*i}:{77+2*i}]')
        a('s_waitcnt lgkmcnt(0)')

def sleep(n):
    while n > 0:
        a(f's_sleep {min(n, 127)}'); n -= 127

def srd_ws(s, off_sgpr, size):
    a(f's_add_u32 s{s}, s36, s{off_sgpr}')
    a(f's_addc_u32 s{s+1}, s37, 0')
    a(f's_mov_b32 s{s+2}, {size}')
    a(f's_mov_b32 s{s+3}, 0x00020000')

def allreduce64_add(vs, ts):
    for dpp in ('quad_perm:[1,0,3,2]', 'quad_perm:[2,3,0,1]', 'row_half_mirror', 'row_mirror'):
        for v in vs:
            a(f'v_add_f32_dpp v{v}, v{v}, v{v} {dpp} {DPPM}')
    for sw in ('v_permlane16_swap_b32', 'v_permlane32_swap_b32'):
        for v, t in zip(vs, ts):
            a(f'v_mov_b32 v{t}, v{v}')
        for v, t in zip(vs, ts):
            a(f'{sw} v{v}, v{t}')
        for v, t in zip(vs, ts):
            a(f'v_add_f32 v{v}, v{v}, v{t}')

def reduce_q8(vs, ts):
    for v in vs:
        a(f'v_add_f32_dpp v{v}, v{v}, v{v} row_ror:8 {DPPM}')
    for sw in ('v_permlane16_swap_b32', 'v_permlane32_swap_b32'):
        for v, t in zip(vs, ts):
            a(f'v_mov_b32 v{t}, v{v}')
        for v, t in zip(vs, ts):
            a(f'{sw} v{v}, v{t}')
        for v, t in zip(vs, ts):
            a(f'v_add_f32 v{v}, v{v}, v{t}')

def round_bf16_1(v):
    a(f'v_cvt_pk_bf16_f32 v{v}, v{v}, v{v}')
    a(f'v_lshlrev_b32 v{v}, 16, v{v}')

def sd_from_var(v):
    round_bf16_1(v)
    a(f'v_add_f32 v{v}, {fbits(1e-5)}, v{v}')
    round_bf16_1(v)
    a(f'v_sqrt_f32 v{v}, v{v}')
    round_bf16_1(v)

def cexp(dre, dim, lr2, li, p, t0, t1, t2):
    a(f's_mov_b32 s61, {fbits(float(p))}')
    a(f'v_mul_f32 v{t0}, s61, v{lr2}')
    a(f'v_exp_f32 v{t0}, v{t0}')
    a(f'v_mul_f32 v{t1}, s61, v{li}')
    a(f'v_mul_f32 v{t2}, s62, v{t1}')
    a(f'v_fma_f32 v{dre}, v{t1}, s62, -v{t2}')
    a(f'v_fmac_f32 v{dre}, s63, v{t1}')
    a(f'v_fract_f32 v{t2}, v{t2}')
    a(f'v_add_f32 v{t2}, v{t2}, v{dre}')
    a(f'v_cos_f32 v{dre}, v{t2}')
    a(f'v_sin_f32 v{dim}, v{t2}')
    a(f'v_mul_f32 v{dre}, v{dre}, v{t0}')
    a(f'v_mul_f32 v{dim}, v{dim}, v{t0}')

def cmul(dr, di, ar, ai, br, bi):
    a(f'v_mul_f32 v{dr}, v{ar}, v{br}')
    a(f'v_mul_f32 v{di}, v{ar}, v{bi}')
    a(f'v_fma_f32 v{dr}, -v{ai}, v{bi}, v{dr}')
    a(f'v_fmac_f32 v{di}, v{ai}, v{br}')

def put(row, re, im, tmp, addr, neg=False):
    a(f'v_cvt_pk_bf16_f32 v{tmp}, v{re}, {"-" if neg else ""}v{im}')
    a(f'ds_write_b32 v{addr}, v{tmp} offset:{row*RS}')

def poll_loop(label, loads, check, spin_s='s60'):
    a(f's_movk_i32 {spin_s}, {OPT["spin"]}')
    a(f'{label}:')
    loads()
    a('s_waitcnt vmcnt(0)')
    check()
    a('s_and_b64 exec, exec, vcc')
    a(f's_cbranch_execz {label}_D')
    a(f's_sub_u32 {spin_s}, {spin_s}, 1')
    a(f's_cmp_lg_u32 {spin_s}, 0')
    a('s_sleep 1')
    a(f's_cbranch_scc1 {label}')
    a(f'{label}_D:')

KN = NAME + '_kernel'
a('.text'); a(f'.globl {KN}'); a('.p2align 8'); a(f'.type {KN},@function'); a(f'{KN}:')
a('s_cmp_ge_u32 s2, 256')
a('s_cbranch_scc1 END')
a('s_load_dwordx16 s[4:19], s[0:1], 0')
a('s_load_dwordx16 s[20:35], s[0:1], 64')
a('s_load_dwordx2 s[36:37], s[0:1], 128')
if PROF:
    a('s_memrealtime s[76:77]')
    for i in range(78, 100):
        a(f's_mov_b32 s{i}, 0')
a('v_lshrrev_b32 v2, 6, v0')
a('v_and_b32 v1, 63, v0')
a('v_readfirstlane_b32 s38, v2')
a('v_lshlrev_b32 v3, 4, v0')
a('s_and_b32 s52, s2, 7')
a('s_mul_i32 s52, s52, 24')
a('s_lshr_b32 s53, s2, 3')
a('s_add_u32 s52, s52, s53')
a('s_sub_u32 s53, s2, 192')
for r in range(4):
    a(f'v_mov_b32 v{4+r}, -1')
    a(f'v_mov_b32 v{8+r}, 0')
a(f'v_add_u32 v12, {MISC}, v3')
a('v_cmp_gt_u32 vcc, 4, v0')
a('s_and_saveexec_b64 s[70:71], vcc')
a('ds_write_b128 v12, v[8:11]')
a('s_mov_b64 exec, s[70:71]')
a('s_cmp_ge_u32 s2, 192')
a('s_cbranch_scc1 P_NOUZ')
a('v_lshrrev_b32 v12, 5, v0')
a(f's_movk_i32 s54, {US}')
a('v_mul_lo_u32 v12, v12, s54')
a('v_and_b32 v13, 31, v0')
a('v_lshl_add_u32 v12, v13, 4, v12')
a(f'v_add_u32 v12, {U0+4096}, v12')
a('v_cmp_gt_u32 vcc, 0x60, v0')
a('s_and_saveexec_b64 s[70:71], vcc')
a('ds_write_b128 v12, v[8:11]')
a('s_mov_b64 exec, s[70:71]')
a('P_NOUZ:')
a(f's_mul_i32 s54, s52, 12288')
a(f's_add_u32 s54, s54, {WS_YY}')
a('s_movk_i32 s55, 12288')
a('s_cmp_lt_u32 s2, 192')
a('s_cbranch_scc1 P_R3')
a('s_mul_i32 s54, s53, 18432')
a(f's_add_u32 s54, s54, {WS_PART}')
a('s_movk_i32 s55, 18432')
a('s_cmp_lt_u32 s2, 240')
a('s_cbranch_scc1 P_R3')
a('s_sub_u32 s54, s2, 240')
a('s_mul_i32 s54, s54, 1152')
a(f's_add_u32 s54, s54, {WS_H}')
a('s_movk_i32 s55, 1152')
a('s_cmp_lt_u32 s2, 248')
a('s_cselect_b32 s55, s55, 0')
a('P_R3:')
a('s_mul_i32 s56, s2, 9216')
a(f's_add_u32 s56, s56, {WS_Z}')
a('s_lshl_b32 s57, s2, 5')
a(f's_add_u32 s57, s57, {WS_KEYS}')
a('s_movk_i32 s58, 8192')
a('s_movk_i32 s59, 16384')
a('s_lshl_b32 s64, s2, 3')
a('s_add_u32 s64, s64, s38')
a('s_mul_i32 s64, s64, 1152')
a('v_lshl_add_u32 v2, v1, 3, s64')
for r in range(6):
    a(f'v_mov_b32 v{20+r}, 0')
a('s_waitcnt lgkmcnt(0)')
a(f's_load_dword s39, s[36:37], {WS_EPOCH}')
a('s_mov_b32 s40, s36'); a('s_mov_b32 s41, s37'); a('s_mov_b32 s42, 0x10000000'); a('s_mov_b32 s43, 0x00020000')
a('s_cmp_ge_u32 s38, 8')
a('s_cbranch_scc1 P_NOPOISON')
srd_ws(44, 54, 's55')
srd_ws(48, 56, 9216)
srd_ws(72, 57, 32)
a('buffer_store_dwordx4 v[4:7], v3, s[44:47], 0 offen sc1')
a('buffer_store_dwordx4 v[4:7], v3, s[44:47], s58 offen sc1')
a('buffer_store_dwordx4 v[4:7], v3, s[44:47], s59 offen sc1')
a('buffer_store_dwordx4 v[4:7], v3, s[48:51], 0 offen sc1')
a('buffer_store_dwordx4 v[4:7], v3, s[48:51], s58 offen sc1')
a('buffer_store_dwordx4 v[4:7], v3, s[72:75], 0 offen sc1')
a('P_NOPOISON:')
a('s_cmp_ge_u32 s2, 192')
a('s_cbranch_scc1 P_NOPARAM')
a('s_lshr_b32 s65, s38, 2')
a('s_mul_i32 s66, s52, 3')
a('s_add_u32 s66, s66, s65')
a('s_and_b32 s67, s38, 1')
a('s_lshl_b32 s67, s67, 6')
a('v_add_u32 v14, s67, v1')
a('s_lshl_b32 s67, s66, 8')
a('v_lshl_add_u32 v15, v14, 1, s67')
a('s_lshl_b32 s67, s66, 1')
a('v_mov_b32 v16, s67')
a('global_load_ushort v30, v16, s[18:19]')
a('global_load_ushort v31, v15, s[6:7]')
a('global_load_ushort v32, v15, s[8:9]')
a('global_load_ushort v33, v15, s[10:11]')
a('global_load_ushort v34, v15, s[12:13]')
a('global_load_ushort v35, v15, s[14:15]')
a('global_load_ushort v36, v15, s[16:17]')
a('global_load_ushort v161, v16, s[20:21]')
a('P_NOPARAM:')
a('s_cmp_ge_u32 s38, 8')
a('s_cbranch_scc1 P_NOROW')
a('s_mov_b32 exec_hi, 0xffff')
a('global_load_dwordx2 v[20:21], v2, s[4:5]')
a('global_load_dwordx2 v[22:23], v2, s[4:5] offset:384')
a('global_load_dwordx2 v[24:25], v2, s[4:5] offset:768')
a('s_mov_b64 exec, -1')
a('P_NOROW:')
a('s_cmp_ge_u32 s2, 192')
a('s_cbranch_scc1 NONCONV')
XC = 140
a('s_cmp_lt_u32 s38, 4')
a('s_cbranch_scc1 P_NOCOL')
a('v_subrev_u32 v17, 0x100, v0')
a(f's_movk_i32 s67, {4*1152}')
a('v_mul_lo_u32 v17, v17, s67')
a('s_mul_i32 s67, s52, 6')
a('s_and_b32 s67, s67, 0xfffc')
a('v_add_u32 v17, s67, v17')
for k in range(4):
    a(f'global_load_dwordx2 v[{XC+2*k}:{XC+2*k+1}], v17, s[4:5] offset:{1152*k}')
a('P_NOCOL:')
GA = 150
a('v_and_b32 v18, 0xff, v0')
a('v_lshlrev_b32 v18, 3, v18')
a(f's_mul_i32 s67, s65, {KVS}')
a(f's_add_u32 s67, s67, {KV0}')
a(f's_sub_u32 s68, s67, {17024*4}')
for e in range(0, 12, 2):
    a(f'v_add_u32 v26, {e}, v18')
    a(f'v_add_u32 v27, {e+1}, v18')
    a('v_cvt_f32_u32 v28, v26')
    a('v_cvt_f32_u32 v29, v27')
    a('v_cvt_pk_bf16_f32 v28, v28, v29')
    a('v_lshrrev_b32 v29, 16, v28')
    a('v_and_b32 v28, 0xffff, v28')
    a('v_lshl_add_u32 v28, v28, 2, s68')
    a('v_lshl_add_u32 v29, v29, 2, s68')
    a('v_lshl_add_u32 v26, v26, 2, s67')
    a('v_lshl_add_u32 v27, v27, 2, s67')
    a('v_cmp_gt_u32 vcc, 0x80, v18')
    a(f'v_cndmask_b32 v{GA+e}, v28, v26, vcc')
    if e + 1 < 11:
        a(f'v_cndmask_b32 v{GA+e+1}, v29, v27, vcc')
a('s_barrier')

def ln1(waitcnt):
    a(waitcnt)
    X = 40
    for i in range(6):
        a(f'v_lshlrev_b32 v{X+2*i}, 16, v{20+i}')
        a(f'v_and_b32 v{X+2*i+1}, 0xffff0000, v{20+i}')
    a(f'v_add_f32 v26, v{X}, v{X+1}')
    a(f'v_add_f32 v27, v{X+2}, v{X+3}')
    for i in range(4, 12, 2):
        a(f'v_add_f32 v26, v26, v{X+i}')
        a(f'v_add_f32 v27, v27, v{X+i+1}')
    a('v_add_f32 v26, v26, v27')
    allreduce64_add([26], [27])
    a(f'v_mul_f32 v26, {fbits(1.0/576)}, v26')
    a('v_mov_b32 v27, 0')
    a('v_mov_b32 v28, 0')
    a('s_mov_b32 exec_hi, 0xffff')
    for i in range(0, 12, 2):
        a(f'v_sub_f32 v{X+i}, v{X+i}, v26')
        a(f'v_sub_f32 v{X+i+1}, v{X+i+1}, v26')
        a(f'v_fmac_f32 v27, v{X+i}, v{X+i}')
        a(f'v_fmac_f32 v28, v{X+i+1}, v{X+i+1}')
    a('s_mov_b64 exec, -1')
    a('v_add_f32 v27, v27, v28')
    allreduce64_add([27], [28])
    a(f'v_mul_f32 v27, {fbits(1.0/576)}, v27')
    sd_from_var(27)
    a('v_cvt_pk_bf16_f32 v26, v26, v27')
    a('s_lshl_b32 s67, s38, 3')
    a(f'v_mov_b32 v28, s67')
    a('s_waitcnt lgkmcnt(0)')
    a('s_add_u32 s39, s39, 1')
    a('v_mov_b32 v27, s39')
    a('v_mov_b32 v29, 1')
    a(f'v_mov_b32 v37, {M_CNT}')
    a('s_mov_b64 exec, 1')
    a(f'ds_write_b64 v28, v[26:27] offset:{M_GRAN - 65536*2 if False else 0}' if False else f'v_add_u32 v28, {M_GRAN}, v28')
    a('ds_write_b64 v28, v[26:27]')
    a('ds_add_rtn_u32 v29, v37, v29')
    a('s_waitcnt lgkmcnt(0)')
    a('v_readfirstlane_b32 s67, v29')
    a('s_mov_b64 exec, -1')
    a('s_cmp_lg_u32 s67, 7')
    lab = f'LN1_X{_st[0]}'; _st[0] += 1
    a(f's_cbranch_scc1 {lab}')
    a(f'v_lshlrev_b32 v28, 4, v1')
    a(f'v_add_u32 v29, {M_GRAN}, v28')
    a('s_lshl_b32 s67, s2, 6')
    a(f's_add_u32 s67, s67, {WS_STATS}')
    a('s_mov_b64 exec, 0xf')
    a('ds_read_b128 v[40:43], v29')
    a('s_waitcnt lgkmcnt(0)')
    a('buffer_store_dwordx4 v[40:43], v28, s[40:43], s67 offen sc1')
    a('s_mov_b64 exec, -1')
    a(f'{lab}:')

a('s_cmp_ge_u32 s38, 8')
a('s_cbranch_scc1 C_NOLN1')
a('s_cmp_ge_u32 s38, 4')
a('s_cbranch_scc1 C_W4')
a('s_waitcnt vmcnt(0)')
a('C_W4:')
ln1('s_waitcnt vmcnt(4)')
a('s_branch C_KGEN')
a('C_NOLN1:')
a('s_waitcnt vmcnt(4) lgkmcnt(0)')
a('s_add_u32 s39, s39, 1')
a('C_KGEN:')
stamp(1)
hi, lo = split2(INV2PI)
a(f's_mov_b32 s62, {fbits(hi)}')
a(f's_mov_b32 s63, {fbits(lo)}')
a(f's_mul_i32 s67, s65, {64*RS}')
a('v_lshl_add_u32 v4, v14, 2, s67')
lh, ll = split2(LOG2E)
a('v_lshlrev_b32 v30, 16, v30')
a(f's_mov_b32 s68, {fbits(lh)}')
a(f's_mov_b32 s69, {fbits(ll)}')
a('v_mul_f32 v20, s68, v30')
a('v_fma_f32 v21, v30, s68, -v20')
a('v_fmac_f32 v21, s69, v30')
a('v_exp_f32 v20, v20')
a(f'v_mul_f32 v21, {fbits(0.6931471805599453)}, v21')
a('v_fma_f32 v20, v20, v21, v20')
round_bf16_1(20)
for r in range(6):
    a(f'v_lshlrev_b32 v{11+r if r < 3 else 8+r+6}, 16, v{31+r}' if False else f'v_lshlrev_b32 v{31+r}, 16, v{31+r}')
a('v_mul_f32 v11, v31, v20')
a('v_mul_f32 v12, v32, v20')
a('v_mul_f32 v13, v33, v20')
a('v_mul_f32 v10, v34, v20')
a('v_mul_f32 v11, s68, v11')
cmul(22, 23, 35, 36, 13, 10)
cexp(24, 25, 11, 12, 128, 30, 31, 32)
a('s_bitcmp1_b32 s38, 1')
a('s_cbranch_scc1 C_ROLE1')
cexp(26, 27, 11, 12, 8, 30, 31, 32)
cexp(28, 29, 11, 12, 1024, 30, 31, 32)
cmul(34, 35, 22, 23, 28, 29)
a('v_mov_b32 v36, 1.0')
a('v_mov_b32 v37, 0')
put(48, 36, 37, 40, 4, True)
put(49, 26, 27, 41, 4, True)
put(32, 34, 35, 42, 4)
fr, fi, gr, gi = 26, 27, 36, 37
a('v_mov_b32 v44, v26')
a('v_mov_b32 v45, v27')
ar, ai, br, bi = 34, 35, 38, 39
for j in range(2, 16):
    cmul(gr, gi, fr, fi, 44, 45)
    if j - 1 <= 8:
        cmul(br, bi, ar, ai, 24, 25)
    put(48 + j, gr, gi, 40, 4, True)
    if j - 1 <= 8:
        put(32 + j - 1, br, bi, 41, 4)
        ar, ai, br, bi = br, bi, ar, ai
    fr, fi, gr, gi = gr, gi, fr, fi
a('s_branch C_MFMA')
a('C_ROLE1:')
cexp(26, 27, 11, 12, 1, 30, 31, 32)
cexp(28, 29, 11, 12, 2, 30, 31, 32)
cexp(44, 45, 11, 12, 4, 30, 31, 32)
a('v_mov_b32 v50, v22')
a('v_mov_b32 v51, v23')
for i in range(1, 8):
    cmul(50 + 2 * i, 51 + 2 * i, 48 + 2 * i, 49 + 2 * i, 24, 25)
def row_of(i, e):
    if i < 2: return e + 8 * i
    if i < 4: return 16 + e + 4 * (i - 2)
    return 24 + e + 2 * (i - 4)
for i in range(8):
    put(row_of(i, 0), 50 + 2 * i, 51 + 2 * i, 40 + (i & 1), 4)
for i in range(4, 8):
    cmul(34, 35, 50 + 2 * i, 51 + 2 * i, 44, 45)
    put(row_of(i, 1), 34, 35, 40 + (i & 1), 4)
cur = {i: (50 + 2 * i, 51 + 2 * i) for i in range(4)}
alt = {i: (70 + 2 * i, 71 + 2 * i) for i in range(4)}
for e in range(1, 8):
    for i in range(4):
        if i >= 2 and e > 3: continue
        m = (26, 27) if i < 2 else (28, 29)
        cmul(alt[i][0], alt[i][1], cur[i][0], cur[i][1], m[0], m[1])
    for i in range(4):
        if i >= 2 and e > 3: continue
        put(row_of(i, e), alt[i][0], alt[i][1], 40 + (i & 1), 4)
        cur[i], alt[i] = alt[i], cur[i]
a('C_MFMA:')
a('v_and_b32 v5, 15, v0')
a('v_bfe_u32 v6, v0, 4, 2')
a(f's_movk_i32 s68, {RS}')
a('v_mul_lo_u32 v7, v5, s68')
a('v_lshl_add_u32 v7, v6, 4, v7')
a('v_add_u32 v7, s67, v7')
a('s_and_b32 s69, s38, 3')
a(f's_mul_i32 s68, s69, {16*RS}')
a('v_add_u32 v8, s68, v7')
a(f's_mul_i32 s67, s65, {KVS}')
a(f's_add_u32 s67, s67, {KV0}')
a('s_waitcnt lgkmcnt(0)')
a('s_barrier')
stamp(2)
a('s_cmp_ge_u32 s69, 3')
a('s_cbranch_scc1 C_EXPAND')
for kb in range(8):
    a(f'ds_read_b128 v[{16+8*kb}:{19+8*kb}], v8 offset:{kb*64}')
    a(f'ds_read_b128 v[{20+8*kb}:{23+8*kb}], v7 offset:{48*RS+kb*64}')
for r in range(4):
    a(f'v_mov_b32 v{12+r}, 0')
for kb in range(8):
    a(f's_waitcnt lgkmcnt({14-2*kb})')
    a(f'v_mfma_f32_16x16x32_bf16 v[12:15], v[{16+8*kb}:{19+8*kb}], v[{20+8*kb}:{23+8*kb}], v[12:15]')
a('s_cmp_eq_u32 s69, 1')
a('s_cbranch_scc1 C_T1')
a('s_cmp_eq_u32 s69, 2')
a('s_cbranch_scc1 C_T2')
a('v_and_b32 v9, 1, v6')
a('v_lshlrev_b32 v9, 4, v9')
a('v_lshrrev_b32 v10, 1, v6')
a('v_lshl_add_u32 v9, v10, 9, v9')
a('v_lshl_add_u32 v9, v5, 5, v9')
a('v_add_u32 v9, s67, v9')
a('s_nop 3')
a(f'ds_write_b128 v9, v[12:15]')
a('s_branch C_EXPAND')
a('C_T1:')
a('v_lshlrev_b32 v9, 8, v6')
a('v_add_u32 v9, s67, v9')
a('v_lshl_add_u32 v10, v5, 4, v9')
a('v_lshl_add_u32 v11, v5, 3, v9')
a('v_cmp_gt_u32 vcc, 2, v6')
a('v_cndmask_b32 v9, v11, v10, vcc')
a('v_mov_b32 v10, 0x80')
a('v_cndmask_b32 v10, v10, 8, vcc')
a('v_add_u32 v10, v10, v9')
a(f'ds_write_b64 v9, v[12:13] offset:1024')
a(f'ds_write_b64 v10, v[14:15] offset:1024')
a('s_branch C_EXPAND')
a('C_T2:')
a('v_lshlrev_b32 v9, 8, v6')
a('v_lshl_add_u32 v9, v5, 2, v9')
a('v_add_u32 v9, s67, v9')
a('s_nop 5')
for r in range(4):
    a(f'ds_write_b32 v9, v{12+r} offset:{2048+64*r}')
a('C_EXPAND:')
a('v_and_b32 v9, 0xff, v0')
a(f's_mul_i32 s68, s65, {4*KHS}')
a('v_lshl_add_u32 v9, v9, 4, s68')
a('v_subrev_u32 v17, 0x100, v0')
a('v_lshlrev_b32 v17, 5, v17')
a(f's_movk_i32 s64, {WS_STATS}')
a('s_waitcnt lgkmcnt(0)')
a('s_barrier')
stamp(3)
def expand(ga, addr, off):
    for e in range(11):
        a(f'ds_read_b32 v{20+e}, v{ga+e}')
    a('s_waitcnt lgkmcnt(0)')
    for k in range(4):
        a(f'v_cvt_pk_bf16_f32 v{32+k}, v{20+2*k}, v{21+2*k}')
    a(f'ds_write_b128 v{addr}, v[32:35] offset:{off}')
    for k in range(4):
        a(f'v_cvt_pk_bf16_f32 v{40+k}, v{21+2*k}, v{22+2*k}')
    a(f'ds_write_b128 v{addr}, v[40:43] offset:{off+KHS}')
    for k in range(4):
        a(f'v_cvt_pk_bf16_f32 v{36+k}, v{22+2*k}, v{23+2*k}')
    a(f'ds_write_b128 v{addr}, v[36:39] offset:{off+2*KHS}')
    for k in range(4):
        a(f'v_cvt_pk_bf16_f32 v{44+k}, v{23+2*k}, v{24+2*k}')
    a(f'ds_write_b128 v{addr}, v[44:47] offset:{off+3*KHS}')
expand(GA, 9, 32)
a('s_and_b32 s69, s38, 3')
a('s_cmp_lg_u32 s69, 0')
a('s_cbranch_scc1 C_NOFRONT')
for e in range(11):
    a(f'v_mov_b32 v{GA+e}, {M_ZERO}')
a('s_mov_b64 exec, 2')
for e in range(8, 11):
    a(f'v_mov_b32 v{GA+e}, s67')
    if e > 8:
        a(f'v_add_u32 v{GA+e}, {4*(e-8)}, v{GA+e}')
a('s_mov_b64 exec, 3')
expand(GA, 9, 0)
a('s_mov_b64 exec, -1')
a('C_NOFRONT:')
a('s_cmp_lt_u32 s38, 4')
a('s_cbranch_scc1 C_NOU')
def st_loads():
    a('buffer_load_dwordx4 v[20:23], v17, s[40:43], s64 offen sc1')
    a('buffer_load_dwordx4 v[24:27], v17, s[40:43], s64 offen offset:16 sc1')
def st_check():
    a('v_xor_b32 v28, s39, v21')
    a('v_xor_b32 v29, s39, v23')
    a('v_xor_b32 v30, s39, v25')
    a('v_xor_b32 v31, s39, v27')
    a('v_or3_b32 v28, v28, v29, v30')
    a('v_or_b32 v28, v28, v31')
    a('v_cmp_ne_u32 vcc, 0, v28')
poll_loop('C_STP', st_loads, st_check)
a('s_mov_b64 exec, -1')
stamp(4)
a('s_bitcmp1_b32 s52, 0')
a('s_cselect_b32 s68, 16, 0')
for k in range(4):
    ms = 20 + 2 * k
    a(f'v_alignbit_b32 v{32+k}, v{XC+2*k+1}, v{XC+2*k}, s68')
    a(f'v_lshrrev_b32 v{36+k}, s68, v{XC+2*k+1}')
    a(f'v_and_b32 v{ms+1}, 0xffff0000, v{ms}')
    a(f'v_lshlrev_b32 v{ms}, 16, v{ms}')
    a(f'v_rcp_f32 v{ms+1}, v{ms+1}')
for k in range(4):
    ms = 20 + 2 * k
    a(f'v_lshlrev_b32 v{40+k}, 16, v{32+k}')
    a(f'v_and_b32 v{44+k}, 0xffff0000, v{32+k}')
    a(f'v_lshlrev_b32 v{48+k}, 16, v{36+k}')
    for c in range(3):
        a(f'v_sub_f32 v{40+4*c+k}, v{40+4*c+k}, v{ms}')
for c in range(3):
    for k in range(0, 4, 2):
        r = 40 + 4 * c + k
        a(f'v_cvt_pk_bf16_f32 v{r+1}, v{r}, v{r+1}')
        a(f'v_lshlrev_b32 v{r}, 16, v{r+1}')
        a(f'v_and_b32 v{r+1}, 0xffff0000, v{r+1}')
        a(f'v_mul_f32 v{r}, v{r}, v{21+2*k}')
        a(f'v_mul_f32 v{r+1}, v{r+1}, v{23+2*k}')
a('v_lshrrev_b32 v17, 2, v17')
a(f'v_sub_u32 v17, {U0+4088}, v17')
for c in range(3):
    r = 40 + 4 * c
    a(f'v_cvt_pk_bf16_f32 v{32+2*c}, v{r+3}, v{r+2}')
    a(f'v_cvt_pk_bf16_f32 v{33+2*c}, v{r+1}, v{r}')
    a(f'ds_write_b64 v17, v[{32+2*c}:{33+2*c}] offset:{c*US}')
a('C_NOU:')
a('v_add_u32 v7, 1, v5')
a('v_and_b32 v8, 3, v7')
a('v_sub_u32 v7, v7, v8')
a('v_lshl_add_u32 v7, v6, 3, v7')
a('v_lshlrev_b32 v7, 1, v7')
a(f's_movk_i32 s68, {KHS}')
a('v_mul_lo_u32 v8, v8, s68')
a('v_add_u32 v7, v7, v8')
a('s_and_b32 s69, s38, 1')
a('s_lshl_b32 s69, s69, 8')
a(f's_mul_i32 s68, s65, {4*KHS}')
a('s_add_u32 s68, s68, s69')
a('v_add_u32 v7, s68, v7')
a('v_lshlrev_b32 v8, 5, v5')
a('v_sub_u32 v8, 480, v8')
a('v_lshl_add_u32 v8, v6, 4, v8')
a(f's_mul_i32 s64, s65, {US}')
a(f's_add_u32 s64, s64, {U0}')
a('s_add_u32 s68, s64, s69')
a('v_add_u32 v8, s68, v8')
ACC = 144
for r in range(16):
    a(f'v_mov_b32 v{ACC+r}, 0')
a('s_waitcnt lgkmcnt(0)')
a('s_barrier')
stamp(5)
FA = [16, 80]; FB = [48, 112]
def conv_body(Js, nq):
    def ld(q, c, st):
        return [f'ds_read_b64 v[{FA[st]+4*q}:{FA[st]+4*q+1}], v7 offset:{512*q+64*c}',
                f'ds_read_b64 v[{FA[st]+4*q+2}:{FA[st]+4*q+3}], v7 offset:{512*q+64*c+8}',
                f'ds_read_b128 v[{FB[st]+4*q}:{FB[st]+4*q+3}], v8 offset:{512*(7-q)+64*c}']
    def mf(qa, dl, st):
        t = Js.index(qa + dl)
        return (f'v_mfma_f32_16x16x32_bf16 v[{ACC+4*t}:{ACC+4*t+3}], v[{FA[st]+4*qa}:{FA[st]+4*qa+3}], '
                f'v[{FB[st]+4*dl}:{FB[st]+4*dl+3}], v[{ACC+4*t}:{ACC+4*t+3}]')
    pairs = sorted([(qa, J - qa) for J in Js for qa in range(J + 1)], key=lambda p: (max(p), p))
    for q in range(nq):
        for x in ld(q, 0, 0): a(x)
    for c in range(4):
        st = c & 1
        nxt = [x for q in range(nq) for x in ld(q, c + 1, st ^ 1)] if c < 3 else []
        lastq = -1
        for n, (qa, dl) in enumerate(pairs):
            if c == 0 and max(qa, dl) != lastq:
                lastq = max(qa, dl)
                a(f's_waitcnt lgkmcnt({min(15, 3*(nq-1-lastq))})')
            a(mf(qa, dl, st))
            if c > 0 or lastq == nq - 1:
                for _ in range(3 if c == 0 else 2):
                    if nxt: a(nxt.pop(0))
        while nxt: a(nxt.pop(0))
        if c < 3:
            a('s_waitcnt lgkmcnt(0)')
a('s_bitcmp1_b32 s38, 1')
a('s_cbranch_scc1 C_JS1')
JSET = [[7, 6, 1, 0], [5, 4, 3, 2]]
conv_body(JSET[0], 8)
a('s_bitcmp1_b32 s38, 0')
a(f's_cselect_b32 s66, {JSET[0][2]}, {JSET[0][0]}')
a(f's_cselect_b32 s67, {JSET[0][3]}, {JSET[0][1]}')
a('s_branch C_RED')
a('C_JS1:')
conv_body(JSET[1], 6)
a('s_bitcmp1_b32 s38, 0')
a(f's_cselect_b32 s66, {JSET[1][2]}, {JSET[1][0]}')
a(f's_cselect_b32 s67, {JSET[1][3]}, {JSET[1][1]}')
a('C_RED:')
stamp(6)
a('s_lshl_b32 s68, s38, 11')
a(f's_add_u32 s68, s68, {RED}')
a('v_lshl_add_u32 v9, v1, 4, s68')
a('s_xor_b32 s68, s68, 2048') if False else None
a('s_xor_b32 s69, s38, 1')
a('s_lshl_b32 s69, s69, 11')
a(f's_add_u32 s69, s69, {RED}')
a('v_lshl_add_u32 v10, v1, 4, s69')
a('s_bitcmp1_b32 s38, 0')
a('s_cbranch_scc1 C_RH1')
a(f'ds_write_b128 v9, v[{ACC+8}:{ACC+11}]')
a(f'ds_write_b128 v9, v[{ACC+12}:{ACC+15}] offset:1024')
for r in range(8):
    a(f'v_mov_b32 v{16+r}, v{ACC+r}')
a('s_branch C_RH2')
a('C_RH1:')
a(f'ds_write_b128 v9, v[{ACC}:{ACC+3}]')
a(f'ds_write_b128 v9, v[{ACC+4}:{ACC+7}] offset:1024')
for r in range(8):
    a(f'v_mov_b32 v{16+r}, v{ACC+8+r}')
a('C_RH2:')
a('v_lshlrev_b32 v11, 5, v5')
a('v_lshl_add_u32 v11, v6, 3, v11')
a('s_add_u32 s64, s64, 4088')
a('s_lshl_b32 s68, s66, 9')
a('s_sub_u32 s68, s64, s68')
a('v_sub_u32 v12, s68, v11')
a('s_lshl_b32 s68, s67, 9')
a('s_sub_u32 s68, s64, s68')
a('v_sub_u32 v13, s68, v11')
a('v_lshrrev_b32 v14, 1, v6')
a('v_lshl_add_u32 v14, v5, 1, v14')
a('v_mul_u32_u24 v14, 48, v14')
a('v_and_b32 v15, 1, v6')
a('v_lshl_add_u32 v14, v15, 3, v14')
a('s_lshl_b32 s68, s65, 4')
a(f's_add_u32 s68, s68, {STG}')
a(f's_mul_i32 s69, s66, {32*48}')
a('s_add_u32 s69, s69, s68')
a('v_add_u32 v15, s69, v14')
a(f's_mul_i32 s69, s67, {32*48}')
a('s_add_u32 s69, s69, s68')
a('v_add_u32 v14, s69, v14')
a('v_lshlrev_b32 v161, 16, v161')
a('ds_read_b64 v[32:33], v12')
a('ds_read_b64 v[34:35], v13')
a('s_waitcnt lgkmcnt(0)')
a('s_barrier')
a('ds_read_b128 v[24:27], v10')
a('ds_read_b128 v[28:31], v10 offset:1024')
for jj in range(2):
    U = 32 + 2 * jj
    T = 40 + 4 * jj
    a(f'v_and_b32 v{T}, 0xffff0000, v{U+1}')
    a(f'v_lshlrev_b32 v{T+1}, 16, v{U+1}')
    a(f'v_and_b32 v{T+2}, 0xffff0000, v{U}')
    a(f'v_lshlrev_b32 v{T+3}, 16, v{U}')
    for r in range(4):
        a(f'v_mul_f32 v{T+r}, v{T+r}, v161')
    a(f'v_cvt_pk_bf16_f32 v{T+1}, v{T}, v{T+1}')
    a(f'v_cvt_pk_bf16_f32 v{T+3}, v{T+2}, v{T+3}')
    a(f'v_lshlrev_b32 v{T}, 16, v{T+1}')
    a(f'v_and_b32 v{T+1}, 0xffff0000, v{T+1}')
    a(f'v_lshlrev_b32 v{T+2}, 16, v{T+3}')
    a(f'v_and_b32 v{T+3}, 0xffff0000, v{T+3}')
for jj in range(2):
    A = 16 + 4 * jj
    T = 40 + 4 * jj
    a(f's_waitcnt lgkmcnt({1-jj})')
    for r in range(4):
        a(f'v_add_f32 v{A+r}, v{A+r}, v{24+4*jj+r}')
    a(f'v_cvt_pk_bf16_f32 v{A+1}, v{A}, v{A+1}')
    a(f'v_cvt_pk_bf16_f32 v{A+3}, v{A+2}, v{A+3}')
    a(f'v_lshlrev_b32 v{A}, 16, v{A+1}')
    a(f'v_and_b32 v{A+1}, 0xffff0000, v{A+1}')
    a(f'v_lshlrev_b32 v{A+2}, 16, v{A+3}')
    a(f'v_and_b32 v{A+3}, 0xffff0000, v{A+3}')
    for r in range(4):
        a(f'v_add_f32 v{A+r}, v{A+r}, v{T+r}')
    a(f'v_cvt_pk_bf16_f32 v{36+2*jj}, v{A}, v{A+1}')
    a(f'v_cvt_pk_bf16_f32 v{37+2*jj}, v{A+2}, v{A+3}')
    a(f'v_min_u32 v{36+2*jj}, -2, v{36+2*jj}')
    a(f'v_min_u32 v{37+2*jj}, -2, v{37+2*jj}')
    a(f'ds_write_b64 v{15-jj}, v[{36+2*jj}:{37+2*jj}]')
a(f'v_add_u32 v9, {STG}, v3')
a(f's_mul_i32 s68, s52, 12288')
a(f's_add_u32 s68, s68, {WS_YY}')
a('s_waitcnt lgkmcnt(0)')
a('s_barrier')
a('ds_read_b128 v[16:19], v9')
a('s_waitcnt lgkmcnt(0)')
a('buffer_store_dwordx4 v[16:19], v3, s[40:43], s68 offen sc1')
a('s_cmp_lg_u32 s2, 0')
a('s_cbranch_scc1 C_NOEP')
a('s_cmp_lg_u32 s38, 11')
a('s_cbranch_scc1 C_NOEP')
a('v_mov_b32 v20, s39')
a(f'v_mov_b32 v21, {WS_EPOCH}')
a('s_mov_b64 exec, 1')
a('buffer_store_dword v20, v21, s[40:43], 0 offen sc1')
a('s_mov_b64 exec, -1')
a('C_NOEP:')
stamp(7)
a(f's_movk_i32 s69, {OPT["d_yy"]}')
a('s_branch LN2')

a('NONCONV:')
a('s_barrier')
WB = 56
a('s_cmp_ge_u32 s38, 8')
a('s_cbranch_scc1 N_NOLN1')
ln1('s_waitcnt vmcnt(0)')
a('s_branch N_W')
a('N_NOLN1:')
a('s_waitcnt lgkmcnt(0)')
a('s_add_u32 s39, s39, 1')
a('N_W:')
stamp(1)
a('s_cmp_ge_u32 s2, 240')
a('s_cbranch_scc1 N_CHECK')
a('v_and_b32 v5, 15, v0')
a('v_bfe_u32 v6, v0, 4, 2')
a('s_cmp_ge_u32 s38, 9')
a('s_cbranch_scc1 N_WD')
a('s_mul_i32 s64, s38, 43')
a('s_lshr_b32 s64, s64, 7')
a('s_mul_i32 s65, s64, 3')
a('s_sub_u32 s65, s38, s65')
a('s_mul_i32 s66, s53, 192')
a('s_lshl_b32 s67, s64, 6')
a('s_add_u32 s66, s66, s67')
a(f's_mul_i32 s67, s65, {192*9216}')
a('s_add_u32 s66, s66, s67')
a('v_and_b32 v7, 7, v5')
a(f's_mov_b32 s67, {8*9216}')
a('v_mul_lo_u32 v8, v6, s67')
a('v_lshl_add_u32 v8, v7, 3, v8')
a('v_add_u32 v8, s66, v8')
a('v_cmp_gt_u32 vcc, 8, v5')
a('v_mov_b32 v10, s28')
a('v_mov_b32 v11, s26')
a('v_cndmask_b32 v10, v10, v11, vcc')
a('v_mov_b32 v11, s29')
a('v_mov_b32 v12, s27')
a('v_cndmask_b32 v11, v11, v12, vcc')
a('v_add_co_u32 v10, vcc, v10, v8')
a('v_addc_co_u32 v11, vcc, 0, v11, vcc')
a('s_movk_i32 s66, 9216')
a(f's_mov_b32 s67, {25*9216}')
for ks in range(6):
    for e in range(8):
        r = WB + 16 * (ks + 1) + 2 * e
        a(f'global_load_dwordx2 v[{r}:{r+1}], v[10:11], off')
        if not (ks == 5 and e == 7):
            a(f'v_add_co_u32 v10, vcc, {"s66" if e < 7 else "s67"}, v10')
            a('v_addc_co_u32 v11, vcc, 0, v11, vcc')
a('s_mov_b32 s66, 0x05040100')
a('s_mov_b32 s67, 0x07060302')
for ks in range(6):
    a(f's_waitcnt vmcnt({8*(5-ks)})')
    S = WB + 16 * (ks + 1); T = WB + 16 * ks
    for p in range(4):
        for j in range(2):
            lo_, hi_ = S + 4 * p + j, S + 4 * p + 2 + j
            a(f'v_perm_b32 v{T+8*j+p}, v{hi_}, v{lo_}, s66')
            a(f'v_perm_b32 v{T+8*j+4+p}, v{hi_}, v{lo_}, s67')
a('s_branch N_CHECK')
a('N_WD:')
a('v_lshrrev_b32 v7, 3, v1')
a('v_bfe_u32 v8, v1, 1, 2')
a('v_xor_b32 v8, v8, v6')
a('v_and_b32 v9, 1, v1')
a('v_lshl_add_u32 v8, v8, 1, v9')
a('s_movk_i32 s66, 1152')
a('v_mul_lo_u32 v7, v7, s66')
a('v_lshl_add_u32 v7, v8, 4, v7')
a('s_mov_b32 s44, s30'); a('s_mov_b32 s45, s31'); a(f's_mov_b32 s46, {D*F*2}'); a('s_mov_b32 s47, 0x00020000')
a('s_sub_u32 s64, s38, 9')
a(f's_mul_i32 s65, s53, {96*1152}')
a('s_mul_i32 s66, s64, 384')
a('s_add_u32 s65, s65, s66')
a(f's_mul_i32 s66, s64, {3*96*128}')
for cb in range(3):
    for g in range(12):
        a(f's_add_u32 m0, s66, {cb*96*128 + g*1024}')
        a(f's_add_u32 s67, s65, {cb*128 + g*8*1152}')
        a('buffer_load_dwordx4 v7, s[44:47], s67 offen lds')
a('N_CHECK:')
stamp(2)
sleep(OPT['d_nc'])
a('s_cmp_lt_u32 s38, 4')
a('s_cbranch_scc1 N_NOCHK')
a('v_subrev_u32 v17, 0x100, v0')
a('v_lshlrev_b32 v17, 5, v17')
a(f's_movk_i32 s64, {WS_STATS}')
poll_loop('N_STP', st_loads, st_check)
a('s_mov_b64 exec, -1')
a('N_NOCHK:')
a('s_barrier')
stamp(4)
a(f's_movk_i32 s69, {OPT.get("d_yy_nc", 40)}')

a('LN2:')
a('v_and_b32 v4, 7, v1')
a('v_lshrrev_b32 v5, 3, v1')
a('s_lshl_b32 s64, s2, 3')
a('v_add_u32 v6, s64, v4')
a('s_movk_i32 s65, 1152')
a('v_mul_lo_u32 v7, v6, s65')
a('s_lshl_b32 s65, s38, 7')
a('v_lshl_add_u32 v8, v5, 4, s65')
a('v_add_u32 v7, v7, v8')
a('s_cmp_ge_u32 s38, 9')
a('s_cbranch_scc1 L_IDLE')
a('global_load_dwordx4 v[12:15], v7, s[4:5]')
a('global_load_dwordx4 v[16:19], v8, s[24:25]')
a('s_mov_b32 s65, 43691')
a('v_mul_u32_u24 v9, s65, v0')
a('v_lshrrev_b32 v9, 17, v9')
a('v_mul_u32_u24 v10, 3, v9')
a('v_sub_u32 v10, v0, v10')
a('s_movk_i32 s65, 12288')
a('v_mul_lo_u32 v9, v9, s65')
a('v_lshl_add_u32 v9, v10, 4, v9')
a('s_mul_i32 s65, s2, 48')
a(f's_add_u32 s65, s65, {WS_YY}')
a('v_bfe_u32 v10, v1, 2, 2')
a('v_bfe_u32 v11, v1, 1, 1')
a('v_lshl_add_u32 v10, v11, 3, v10')
a('v_lshrrev_b32 v11, 4, v1')
a('v_lshl_add_u32 v10, v11, 4, v10')
a('v_lshlrev_b32 v10, 4, v10')
a('v_and_b32 v11, 1, v1')
a('v_lshl_add_u32 v10, v11, 3, v10')
a('s_lshl_b32 s66, s38, 10')
a(f's_add_u32 s66, s66, {YT}')
a('v_add_u32 v10, s66, v10')
a(f'v_add_u32 v11, {YT}, v3')
a('L_DLY:')
a('s_sleep 1')
a('s_sub_u32 s69, s69, 1')
a('s_cmp_gt_i32 s69, 0')
a('s_cbranch_scc1 L_DLY')
def yy_loads():
    a('buffer_load_dwordx4 v[20:23], v9, s[40:43], s65 offen sc1')
def chk4(r):
    def f():
        a(f'v_max_u32 v28, v{r}, v{r+1}')
        a(f'v_max3_u32 v28, v28, v{r+2}, v{r+3}')
        a('v_cmp_eq_u32 vcc, -1, v28')
    return f
poll_loop('L_YP', yy_loads, chk4(20))
a('s_mov_b64 exec, -1')
a('ds_write_b128 v11, v[20:23]')
a('s_waitcnt lgkmcnt(0)')
a('s_barrier')
stamp(8)
a('ds_read_b64_tr_b16 v[20:21], v10')
a('ds_read_b64_tr_b16 v[22:23], v10 offset:64')
H = 32
for i in range(4):
    a(f'v_lshlrev_b32 v{H+2*i}, 16, v{12+i}')
    a(f'v_and_b32 v{H+2*i+1}, 0xffff0000, v{12+i}')
a('s_lshl_b32 s66, s38, 5')
a(f's_add_u32 s66, s66, {M_EX}')
a('v_lshl_add_u32 v9, v4, 2, s66')
a(f'v_lshlrev_b32 v11, 2, v4')
a(f'v_add_u32 v11, {M_EX}, v11')
a('s_waitcnt lgkmcnt(0)')
for i in range(4):
    a(f'v_lshlrev_b32 v24, 16, v{20+i}')
    a(f'v_and_b32 v25, 0xffff0000, v{20+i}')
    a(f'v_add_f32 v{H+2*i}, v{H+2*i}, v24')
    a(f'v_add_f32 v{H+2*i+1}, v{H+2*i+1}, v25')
    a(f'v_cvt_pk_bf16_f32 v{12+i}, v{H+2*i}, v{H+2*i+1}')
    a(f'v_lshlrev_b32 v{H+2*i}, 16, v{12+i}')
    a(f'v_and_b32 v{H+2*i+1}, 0xffff0000, v{12+i}')
a(f'v_add_f32 v24, v{H}, v{H+1}')
a(f'v_add_f32 v25, v{H+2}, v{H+3}')
a(f'v_add_f32 v26, v{H+4}, v{H+5}')
a(f'v_add_f32 v27, v{H+6}, v{H+7}')
a('v_add_f32 v24, v24, v25')
a('v_add_f32 v26, v26, v27')
a('v_add_f32 v24, v24, v26')
def xwave(v, slot, bar_only=False):
    reduce_q8([v], [25])
    a('s_mov_b64 exec, 0xff')
    a(f'ds_write_b32 v9, v{v} offset:{slot*320}')
    a('s_mov_b64 exec, -1')
    a('s_waitcnt lgkmcnt(0)')
    a('s_barrier')
    for w in range(9):
        a(f'ds_read_b32 v{40+w}, v11 offset:{slot*320+w*32}')
    a('s_waitcnt lgkmcnt(0)')
    a('v_add_f32 v40, v40, v41'); a('v_add_f32 v42, v42, v43'); a('v_add_f32 v44, v44, v45'); a('v_add_f32 v46, v46, v47')
    a('v_add_f32 v40, v40, v42'); a('v_add_f32 v44, v44, v46'); a('v_add_f32 v40, v40, v48')
    a(f'v_add_f32 v{v}, v40, v44')
xwave(24, 0)
a(f'v_mul_f32 v24, {fbits(1.0/576)}, v24')
a(f'v_sub_f32 v28, v{H}, v24')
a(f'v_sub_f32 v29, v{H+1}, v24')
a('v_mul_f32 v26, v28, v28')
a('v_mul_f32 v27, v29, v29')
for i in range(2, 8, 2):
    a(f'v_sub_f32 v28, v{H+i}, v24')
    a(f'v_sub_f32 v29, v{H+i+1}, v24')
    a('v_fmac_f32 v26, v28, v28')
    a('v_fmac_f32 v27, v29, v29')
a('v_add_f32 v26, v26, v27')
round_bf16_1(24)
xwave(26, 1)
a(f'v_mul_f32 v26, {fbits(1.0/576)}, v26')
sd_from_var(26)
a('v_rcp_f32 v26, v26')
a(f's_mov_b32 s65, {WS_Z}')
for i in range(4):
    x0, x1 = 28, 29
    a(f'v_sub_f32 v{x0}, v{H+2*i}, v24')
    a(f'v_sub_f32 v{x1}, v{H+2*i+1}, v24')
    a(f'v_cvt_pk_bf16_f32 v{x1}, v{x0}, v{x1}')
    a(f'v_lshlrev_b32 v{x0}, 16, v{x1}')
    a(f'v_and_b32 v{x1}, 0xffff0000, v{x1}')
    a(f'v_mul_f32 v{x0}, v{x0}, v26')
    a(f'v_mul_f32 v{x1}, v{x1}, v26')
    a(f'v_cvt_pk_bf16_f32 v{20+i}, v{x0}, v{x1}')
    a(f'v_min_u32 v{20+i}, -2, v{20+i}')
a('buffer_store_dwordx4 v[20:23], v7, s[40:43], s65 offen sc1')
a('v_mov_b32 v24, 0')
a('v_mov_b32 v26, 0')
for i in range(4):
    a(f'v_lshlrev_b32 v28, 16, v{20+i}')
    a(f'v_and_b32 v29, 0xffff0000, v{20+i}')
    a(f'v_lshlrev_b32 v30, 16, v{16+i}')
    a(f'v_and_b32 v31, 0xffff0000, v{16+i}')
    a('v_fmac_f32 v24, v28, v30')
    a('v_fmac_f32 v26, v29, v31')
    a(f'v_add_f32 v28, v28, v{H+2*i}')
    a(f'v_add_f32 v29, v29, v{H+2*i+1}')
    a(f'v_cvt_pk_bf16_f32 v{16+i}, v28, v29')
a('v_add_f32 v24, v24, v26')
xwave(24, 2)
a('s_cmp_lg_u32 s38, 0')
a('s_cbranch_scc1 L_KEYD')
a('v_cvt_pk_bf16_f32 v24, v24, v24')
a('v_and_b32 v24, 0xffff0000, v24')
a('v_ashrrev_i32 v25, 31, v24')
a('v_or_b32 v25, 0x80000000, v25')
a('v_xor_b32 v24, v24, v25')
a('v_and_b32 v24, 0xffff0000, v24')
a('v_sub_u32 v25, 0x7ff, v6')
a('v_or_b32 v24, v24, v25')
a(f'v_mov_b32_dpp v25, v24 row_shl:1 {DPPM}')
a(f'v_mov_b32_dpp v26, v24 row_shl:2 {DPPM}')
a(f'v_mov_b32_dpp v27, v24 row_shl:3 {DPPM}')
a('v_lshlrev_b32 v28, 2, v6')
a(f's_mov_b32 s65, {WS_KEYS}')
a('s_mov_b64 exec, 0x11')
a('buffer_store_dwordx4 v[24:27], v28, s[40:43], s65 offen sc1')
a('s_mov_b64 exec, -1')
a('s_branch L_KEYD')
a('L_IDLE:')
for _ in range(4):
    a('s_barrier')
a('L_KEYD:')
stamp(9)
SORT8 = [(0,1),(2,3),(4,5),(6,7),(0,2),(1,3),(4,6),(5,7),(1,2),(5,6),(0,4),(3,7),(1,5),(2,6),(1,4),(3,6),(2,4),(3,5),(3,4)]
def ce(regs, i, j, tmp):
    x, y = regs[i], regs[j]
    t = tmp[0]
    a(f'v_max_u32 v{t}, v{x}, v{y}')
    a(f'v_min_u32 v{y}, v{x}, v{y}')
    regs[i] = t
    tmp[0] = x
def merge_level(regs, alt, dpp, tmp, final=False):
    for i in range(8):
        a(f'v_max_u32_dpp v{alt[i]}, v{regs[7-i]}, v{regs[i]} {dpp} {DPPM}')
    for i in range(8):
        regs[i], alt[i] = alt[i], regs[i]
    if final: return
    for st in (4, 2, 1):
        for i in range(8):
            if i & st == 0:
                ce(regs, i, i + st, tmp)
LV = ['quad_perm:[1,0,3,2]', 'quad_perm:[2,3,0,1]', 'row_half_mirror', 'row_mirror']
K0 = 24
a('v_and_b32 v10, 15, v1')
a('v_lshlrev_b32 v10, 5, v10')
a(f'v_add_u32 v10, {M_TOP}, v10')
a('s_cmp_ge_u32 s38, 4')
a('s_cbranch_scc1 T_S2')
a('v_lshlrev_b32 v9, 5, v0')
a(f's_mov_b32 s65, {WS_KEYS}')
a('v_lshrrev_b32 v11, 4, v0')
a('v_lshlrev_b32 v11, 5, v11')
a(f'v_add_u32 v11, {M_TOP}, v11')
sleep(OPT['d_keys'])
def k_loads():
    a(f'buffer_load_dwordx4 v[{K0}:{K0+3}], v9, s[40:43], s65 offen sc1')
    a(f'buffer_load_dwordx4 v[{K0+4}:{K0+7}], v9, s[40:43], s65 offen offset:16 sc1')
def k_check():
    a(f'v_max_u32 v44, v{K0}, v{K0+4}')
    a('v_cmp_eq_u32 vcc, -1, v44')
def k_check_full():
    a(f'v_max3_u32 v44, v{K0}, v{K0+1}, v{K0+2}')
    a(f'v_max3_u32 v45, v{K0+3}, v{K0+4}, v{K0+5}')
    a(f'v_max3_u32 v44, v44, v{K0+6}, v{K0+7}')
    a('v_max_u32 v44, v44, v45')
    a('v_cmp_eq_u32 vcc, -1, v44')
poll_loop('T_KP', k_loads, k_check_full)
a('s_mov_b64 exec, -1')
stamp(10)
regs = list(range(K0, K0 + 8)); alt = list(range(K0 + 8, K0 + 16)); tmp = [K0 + 16]
for i, j in SORT8:
    ce(regs, i, j, tmp)
for dpp in LV:
    merge_level(regs, alt, dpp, tmp)
for i in range(8):
    a(f'v_mov_b32 v{44+i}, v{regs[i]}')
a('s_mov_b32 exec_lo, 0x00010001')
a('s_mov_b32 exec_hi, 0x00010001')
a('ds_write_b128 v11, v[44:47]')
a('ds_write_b128 v11, v[48:51] offset:16')
a('s_mov_b64 exec, -1')
a('s_waitcnt lgkmcnt(0)')
a('T_S2:')
a('s_barrier')
a(f'ds_read_b128 v[{K0}:{K0+3}], v10')
a(f'ds_read_b128 v[{K0+4}:{K0+7}], v10 offset:16')
a('s_waitcnt lgkmcnt(0)')
regs = list(range(K0, K0 + 8)); alt = list(range(K0 + 8, K0 + 16)); tmp = [K0 + 16]
for n, dpp in enumerate(LV):
    merge_level(regs, alt, dpp, tmp, final=False)
TOPR = regs[:]
for i in range(8):
    a(f'v_readfirstlane_b32 s{44+i}, v{TOPR[i]}')
stamp(11)
a('s_cmp_ge_u32 s38, 9')
a('s_cbranch_scc1 O_DONE')
a('v_sub_u32 v9, 0x7ff, v6')
a('v_mov_b32 v10, -1')
for i in range(8):
    a(f's_and_b32 s64, s{44+i}, 0x7ff')
    a('v_cmp_eq_u32 vcc, s64, v9')
    a(f'v_cndmask_b32 v10, v10, {i}, vcc')
a('s_mov_b32 s72, s32'); a('s_mov_b32 s73, s33'); a(f's_mov_b32 s74, {XBYTES}'); a('s_mov_b32 s75, 0x00020000')
a('s_movk_i32 s64, 1152')
a('v_mul_lo_u32 v11, v10, s64')
a('v_add_u32 v11, v11, v8')
a(f's_mov_b32 s65, {WS_H}')
for i in range(4):
    a(f'v_min_u32 v{12+i}, -2, v{12+i}')
a('v_cmp_gt_i32 vcc, 0, v10')
a('s_and_saveexec_b64 s[70:71], vcc')
a('buffer_store_dwordx4 v[16:19], v7, s[72:75], 0 offen')
a('s_xor_b64 exec, exec, s[70:71]')
a('s_cbranch_execz O_NOSEL')
a('buffer_store_dwordx4 v[12:15], v11, s[40:43], s65 offen sc1')
a('O_NOSEL:')
a('s_mov_b64 exec, -1')
a('O_DONE:')
a('s_cmp_lt_u32 s2, 144')
a('s_cbranch_scc1 FINAL')
a('s_cmp_lt_u32 s2, 192')
a('s_cbranch_scc1 END')
a('s_cmp_ge_u32 s2, 240')
a('s_cbranch_scc1 END')
a('v_and_b32 v5, 15, v1')
a('v_lshrrev_b32 v6, 4, v1')
a('s_cmp_ge_u32 s38, 9')
a('s_cbranch_scc1 F_WAITD')
a('v_mov_b32 v7, s44')
for i in range(1, 8):
    m = 0x01010101 << i
    a(f's_mov_b32 s66, 0x{m:08x}')
    a(f's_mov_b32 s67, 0x{m:08x}')
    a(f'v_mov_b32 v8, s{44+i}')
    a(f'v_cndmask_b32 v7, v7, v8, s[66:67]')
a('v_and_b32 v7, 0x7ff, v7')
a('v_sub_u32 v7, 0x7ff, v7')
a('s_movk_i32 s64, 1152')
a('v_mul_lo_u32 v7, v7, s64')
a('v_lshl_add_u32 v7, v6, 4, v7')
a('s_mul_i32 s64, s38, 43')
a('s_lshr_b32 s64, s64, 7')
a('s_mul_i32 s65, s64, 3')
a('s_sub_u32 s65, s38, s65')
a('s_mul_i32 s65, s65, 384')
a(f's_add_u32 s65, s65, {WS_Z}')
ZF = 8
def z_loads():
    for ks in range(6):
        a(f'buffer_load_dwordx4 v[{ZF+4*ks}:{ZF+4*ks+3}], v7, s[40:43], s65 offen offset:{64*ks} sc1')
def z_check():
    a(f'v_max3_u32 v48, v{ZF}, v{ZF+1}, v{ZF+2}')
    a(f'v_max3_u32 v49, v{ZF+3}, v{ZF+4}, v{ZF+5}')
    for r in range(6, 24, 6):
        a(f'v_max3_u32 v48, v48, v{ZF+r}, v{ZF+r+1}')
        a(f'v_max3_u32 v49, v49, v{ZF+r+2}, v{ZF+r+3}')
        a(f'v_max3_u32 v48, v48, v{ZF+r+4}, v{ZF+r+5}')
    a('v_max_u32 v48, v48, v49')
    a('v_cmp_eq_u32 vcc, -1, v48')
poll_loop('F_ZP', z_loads, z_check)
a('s_mov_b64 exec, -1')
GA_ = 32
for ks in range(6):
    for c in range(4):
        W = WB + 16 * ks + 4 * c
        src = f'v[{GA_+4*c}:{GA_+4*c+3}]' if ks else '0'
        a(f'v_mfma_f32_16x16x32_bf16 v[{GA_+4*c}:{GA_+4*c+3}], v[{W}:{W+3}], v[{ZF+4*ks}:{ZF+4*ks+3}], {src}')
a('s_lshl_b32 s66, s38, 11')
a(f's_add_u32 s66, s66, {GP0}')
a('v_lshlrev_b32 v7, 7, v6')
a('v_lshl_add_u32 v7, v5, 4, v7')
a('v_add_u32 v7, s66, v7')
a('s_mov_b32 exec_lo, 0x00ff00ff')
a('s_mov_b32 exec_hi, 0x00ff00ff')
for c in range(4):
    a(f'ds_write_b128 v7, v[{GA_+4*c}:{GA_+4*c+3}] offset:{512*c}')
a('s_mov_b64 exec, -1')
a('F_WAITD:')
a('s_lshr_b32 s64, s38, 2')
a('s_and_b32 s65, s38, 3')
a(f's_mul_i32 s66, s64, {3*2048}')
a('s_lshl_b32 s67, s65, 9')
a('s_add_u32 s66, s66, s67')
a(f's_add_u32 s66, s66, {GP0}')
a('v_and_b32 v8, 7, v1')
a('v_bfe_u32 v9, v1, 3, 2')
a('v_lshrrev_b32 v10, 5, v1')
a('v_lshlrev_b32 v11, 4, v8')
a('v_lshl_add_u32 v11, v9, 2, v11')
a('v_lshl_add_u32 v11, v10, 7, v11')
a('v_add_u32 v11, s66, v11')
a(f'v_mul_u32_u24 v12, {HIDS}, v8')
a('v_lshl_add_u32 v12, v10, 5, v12')
a('v_lshl_add_u32 v12, v9, 3, v12')
a('s_lshl_b32 s66, s64, 6')
a('s_lshl_b32 s67, s65, 1')
a('s_add_u32 s66, s66, s67')
a(f's_add_u32 s66, s66, {HID}')
a('v_add_u32 v12, s66, v12')
a('s_waitcnt vmcnt(0) lgkmcnt(0)')
a('s_barrier')
for kt in range(3):
    a(f'ds_read_b32 v{16+kt}, v11 offset:{kt*2048}')
    a(f'ds_read_b32 v{20+kt}, v11 offset:{kt*2048+256}')
a('v_lshrrev_b32 v13, 2, v5')
a('v_lshl_add_u32 v13, v6, 2, v13')
a('v_bfe_u32 v14, v13, 1, 2')
a('v_lshlrev_b32 v13, 7, v13')
a('v_and_b32 v15, 3, v5')
a('v_lshl_add_u32 v13, v15, 3, v13')
a(f's_mul_i32 s66, s38, {96*128}')
a('v_add_u32 v13, s66, v13')
for t in range(4):
    a(f'v_xor_b32 v15, {t}, v14')
    a(f'v_lshl_add_u32 v{24+t}, v15, 5, v13')
a('v_and_b32 v28, 7, v5')
a(f'v_mul_u32_u24 v28, {HIDS}, v28')
a('v_lshl_add_u32 v28, v6, 3, v28')
a(f'v_add_u32 v28, {HID}, v28')
a('s_waitcnt lgkmcnt(0)')
a('v_add_f32 v16, v16, v17'); a('v_add_f32 v20, v20, v21')
a('v_add_f32 v16, v16, v18'); a('v_add_f32 v20, v20, v22')
a('v_cvt_pk_bf16_f32 v20, v16, v20')
a('v_lshlrev_b32 v16, 16, v20')
a('v_and_b32 v20, 0xffff0000, v20')
a(f'v_mul_f32 v17, {fbits(-LOG2E)}, v16')
a('v_exp_f32 v17, v17')
a('v_add_f32 v17, 1.0, v17')
a('v_rcp_f32 v17, v17')
a('v_mul_f32 v16, v16, v17')
round_bf16_1(16)
a('v_mul_f32 v16, v16, v20')
a('v_cvt_pk_bf16_f32 v16, v16, v16')
a('ds_write_b16 v12, v16')
a('s_cmp_ge_u32 s38, 9')
a('s_cbranch_scc1 F_NOA')
AW = 56
for ks in range(3):
    for t in range(4):
        r = AW + 16 * ks + 4 * t
        a(f'ds_read_b64_tr_b16 v[{r}:{r+1}], v{24+t} offset:{ks*4096}')
        a(f'ds_read_b64_tr_b16 v[{r+2}:{r+3}], v{24+t} offset:{ks*4096+2048}')
a('F_NOA:')
a('s_waitcnt lgkmcnt(0)')
a('s_barrier')
a('s_cmp_ge_u32 s38, 9')
a('s_cbranch_scc1 END')
for ks in range(3):
    a(f'ds_read_b64 v[{8+4*ks}:{9+4*ks}], v28 offset:{64*ks}')
    a(f'ds_read_b64 v[{10+4*ks}:{11+4*ks}], v28 offset:{64*ks+32}')
a('v_and_b32 v20, 7, v5')
a('s_movk_i32 s66, 2304')
a('v_mul_lo_u32 v20, v20, s66')
a('v_lshrrev_b32 v21, 3, v5')
a('v_lshl_add_u32 v20, v21, 6, v20')
a('v_lshl_add_u32 v20, v6, 4, v20')
a('s_mul_i32 s66, s53, 18432')
a('s_lshl_b32 s67, s38, 8')
a('s_add_u32 s66, s66, s67')
a(f's_add_u32 s66, s66, {WS_PART}')
for ks in range(3):
    a(f's_waitcnt lgkmcnt({4-2*ks})')
    for t in range(4):
        r = AW + 16 * ks + 4 * t
        src = f'v[{32+4*t}:{35+4*t}]' if ks else '0'
        a(f'v_mfma_f32_16x16x32_bf16 v[{32+4*t}:{35+4*t}], v[{r}:{r+3}], v[{8+4*ks}:{11+4*ks}], {src}')
for p in range(2):
    for r in range(4):
        a(f'v_mov_b32_dpp v{32+8*p+r}, v{36+8*p+r} row_shr:8 {DPPM}')
    for r in range(4):
        a(f'v_min_u32 v{32+8*p+r}, -2, v{32+8*p+r}')
    a(f'buffer_store_dwordx4 v[{32+8*p}:{35+8*p}], v20, s[40:43], s66 offen offset:{128*p} sc1')
a('s_branch END')
a('FINAL:')
a('s_cmp_ge_u32 s38, 7')
a('s_cbranch_scc1 END')
a('s_mul_i32 s64, s2, 3641')
a('s_lshr_b32 s64, s64, 16')
a('s_mul_i32 s65, s64, 18')
a('s_sub_u32 s65, s2, s65')
a('s_mov_b32 s66, s44')
for i in range(1, 8):
    a(f's_cmp_eq_u32 s64, {i}')
    a(f's_cselect_b32 s66, s{44+i}, s66')
a('s_and_b32 s67, s66, 0x7ff')
a('s_sub_u32 s67, 0x7ff, s67')
a('s_mul_i32 s67, s67, 1152')
a('s_lshl_b32 s68, s65, 6')
a('s_add_u32 s67, s67, s68')
a('s_cmp_eq_u32 s38, 6')
a('s_cbranch_scc1 FN_HZ')
a('v_lshrrev_b32 v4, 3, v0')
a('s_movk_i32 s68, 18432')
a('v_mul_lo_u32 v4, v4, s68')
a('v_and_b32 v5, 7, v0')
a('v_lshl_add_u32 v4, v5, 4, v4')
a('s_mul_i32 s68, s64, 2304')
a('s_lshl_b32 s69, s65, 7')
a('s_add_u32 s68, s68, s69')
a(f's_add_u32 s68, s68, {WS_PART}')
a('s_lshl_b32 s69, s38, 7')
a(f's_add_u32 s69, s69, {M_FIN}')
a('v_lshl_add_u32 v6, v5, 4, s69')
sleep(OPT['d_part'])
def p_loads():
    a('buffer_load_dwordx4 v[20:23], v4, s[40:43], s68 offen sc1')
poll_loop('FN_PP', p_loads, chk4(20))
a('s_mov_b64 exec, -1')
reduce_q8([20, 21, 22, 23], [24, 25, 26, 27])
a('s_mov_b64 exec, 0xff')
a('ds_write_b128 v6, v[20:23]')
a('s_mov_b64 exec, -1')
a('s_branch FN_B')
a('FN_HZ:')
a(f's_add_u32 s68, s67, {WS_Z}')
a('s_mul_i32 s69, s64, 1152')
a('s_lshl_b32 s65, s65, 6')
a('s_add_u32 s69, s69, s65')
a(f's_add_u32 s69, s69, {WS_H - 64}')
a('v_mov_b32 v4, s68')
a('v_mov_b32 v5, s69')
a('v_cmp_gt_u32 vcc, 4, v1')
a('v_cndmask_b32 v4, v5, v4, vcc')
a('v_lshl_add_u32 v4, v1, 4, v4')
a('v_lshlrev_b32 v6, 4, v1')
a(f'v_add_u32 v6, {M_FIN+768}, v6')
sleep(OPT['d_part'])
a('s_mov_b64 exec, 0xff')
def hz_loads():
    a('buffer_load_dwordx4 v[20:23], v4, s[40:43], 0 offen sc1')
poll_loop('FN_HP', hz_loads, chk4(20))
a('s_mov_b64 exec, 0xff')
a('ds_write_b128 v6, v[20:23]')
a('s_mov_b64 exec, -1')
a('FN_B:')
a('s_waitcnt lgkmcnt(0)')
a('s_barrier')
a('s_cmp_lg_u32 s38, 0')
a('s_cbranch_scc1 END')
a('v_and_b32 v4, 31, v1')
a('v_lshlrev_b32 v5, 2, v4')
a(f'v_add_u32 v5, {M_FIN}, v5')
a('v_lshlrev_b32 v6, 1, v4')
a(f'v_add_u32 v7, {M_FIN+768}, v6')
for w in range(6):
    a(f'ds_read_b32 v{8+w}, v5 offset:{128*w}')
a('ds_read_u16 v14, v7')
a('ds_read_u16 v15, v7 offset:64')
a('s_and_b32 s66, s66, 0xffff0000')
a('s_ashr_i32 s68, s66, 31')
a('s_not_b32 s68, s68')
a('s_or_b32 s68, s68, 0x80000000')
a('s_xor_b32 s66, s66, s68')
a('s_and_b32 s66, s66, 0xffff0000')
a('v_mov_b32 v16, s66')
a(f'v_mul_f32 v16, {fbits(-LOG2E)}, v16')
a('v_exp_f32 v16, v16')
a('v_add_f32 v16, 1.0, v16')
a('v_rcp_f32 v16, v16')
round_bf16_1(16)
a('s_mov_b32 s72, s32'); a('s_mov_b32 s73, s33'); a(f's_mov_b32 s74, {XBYTES}'); a('s_mov_b32 s75, 0x00020000')
a('s_waitcnt lgkmcnt(0)')
a('v_add_f32 v8, v8, v9'); a('v_add_f32 v10, v10, v11'); a('v_add_f32 v12, v12, v13')
a('v_add_f32 v8, v8, v10'); a('v_add_f32 v8, v8, v12')
round_bf16_1(8)
a('v_mul_f32 v8, v8, v16')
round_bf16_1(8)
a('v_lshlrev_b32 v14, 16, v14')
a('v_lshlrev_b32 v15, 16, v15')
a('v_add_f32 v8, v8, v14')
round_bf16_1(8)
a('v_add_f32 v8, v8, v15')
a('v_cvt_pk_bf16_f32 v8, v8, v8')
a('s_mov_b32 exec_hi, 0')
a('buffer_store_short v8, v6, s[72:75], s67 offen')
a('s_mov_b64 exec, -1')
a('END:')
if PROF:
    a('s_cmp_ge_u32 s2, 256')
    a('s_cbranch_scc1 END2')
    a('s_memrealtime s[100:101]')
    a(f's_add_u32 s72, s36, {WS_PROF}')
    a('s_addc_u32 s73, s37, 0')
    a(f's_mov_b32 s74, {1<<20}')
    a('s_mov_b32 s75, 0x00020000')
    a('s_mul_i32 s64, s2, 12')
    a('s_add_u32 s64, s64, s38')
    a('s_lshl_b32 s64, s64, 6')
    a('v_mov_b32 v2, s64')
    a('s_mov_b64 exec, 1')
    a('s_waitcnt lgkmcnt(0)')
    for i in range(13):
        a(f'v_mov_b32 v3, s{76+2*i}')
        a(f'buffer_store_dword v3, v2, s[72:75], 0 offen offset:{4*i}')
    a('END2:')
a('s_endpgm')
a.check_branches()

ref = open(f'/code/{NAME}.s.ref').read().split('\n')
head = [l for l in ref if l.startswith(';') and '@launch' not in l and 'Override launch' not in l and 'grid=ceil' not in l]
txt = '\n'.join(head) + f'\n; @launch grid=(256,1,1) block=(768,1,1) lds={LDS_BYTES}\n'
txt += '.amdgcn_target "amdgcn-amd-amdhsa--gfx950"\n' + a.text()
txt += f'''.section .rodata,"a"
.p2align 6
.amdhsa_kernel {KN}
  .amdhsa_next_free_vgpr 168
  .amdhsa_next_free_sgpr 102
  .amdhsa_accum_offset 168
  .amdhsa_group_segment_fixed_size 0
  .amdhsa_kernarg_size 136
  .amdhsa_user_sgpr_count 2
  .amdhsa_user_sgpr_kernarg_segment_ptr 1
  .amdhsa_system_sgpr_workgroup_id_x 1
.end_amdhsa_kernel
'''
args = [x for x in sys.argv[1:] if not x.startswith('--') and '=' not in x]
path = args[0] if args else f'/code/{NAME}.s'
open(path, 'w').write(txt)
print('wrote', path, len(txt))
```

```python
import sys, struct
from asmlib import Asm

NAME = 'sequential_preLN__ssm_conv_s4__moe_arch_mod__prompt'
L, D, N, F = 2048, 576, 128, 4608
XBYTES = L * D * 2
NWG = 240
PROF = '--prof' in sys.argv
OPT = dict(spin=4000, pre_sleep=2, nt=1, outsc=0, colpos=0, colmod=0, noffn=0)
for arg in sys.argv[1:]:
    if '=' in arg:
        k, v = arg.split('=')
        OPT[k] = int(v)
NT = ' nt' if OPT['nt'] else ''

WS_EPOCH = 0
WS_YF = 1024
WS_PF = 2048
WS_STATS = 4096
WS_KEYS = 32768
WS_H = 49152
WS_YY = 65536
WS_Z = WS_YY + XBYTES
WS_PART = WS_Z + XBYTES
WS_PROF = 64 << 20

RS = 544
KV0 = 3 * 64 * RS
KVS = 3072
U0 = KV0 + 3 * KVS
US = 4608
KHS = 4160
RED = 3 * 4 * KHS
STG = RED + 12 * 2048
YT = 0
GP0 = 110592
HID = GP0 + 9 * 4 * 512
HIDS = 208
MISC = 131072
M_CNT = MISC
M_ZERO = MISC + 16
M_GRAN = MISC + 128
M_EX = MISC + 256
M_EX2 = MISC + 1536
M_TOP = MISC + 2304
M_FIN = MISC + 2816
LDS_BYTES = MISC + 4096

LOG2E = 1.4426950408889634
INV2PI = 0.15915494309189535
DPPM = 'row_mask:0xf bank_mask:0xf'

def fbits(x):
    return '0x%08x' % struct.unpack('<I', struct.pack('<f', x))[0]

def split2(x):
    hi = struct.unpack('<f', struct.pack('<f', x))[0]
    return hi, x - hi

a = Asm()
_st = [0]
def stamp(i):
    if PROF:
        a(f's_memrealtime s[{76+2*i}:{77+2*i}]')
        a('s_waitcnt lgkmcnt(0)')

def sleep(n):
    while n > 0:
        a(f's_sleep {min(n, 127)}'); n -= 127

def srd_ws(s, off_sgpr, size):
    a(f's_add_u32 s{s}, s36, s{off_sgpr}')
    a(f's_addc_u32 s{s+1}, s37, 0')
    a(f's_mov_b32 s{s+2}, {size}')
    a(f's_mov_b32 s{s+3}, 0x00020000')

def allreduce64_add(vs, ts):
    for dpp in ('quad_perm:[1,0,3,2]', 'quad_perm:[2,3,0,1]', 'row_half_mirror', 'row_mirror'):
        for v in vs:
            a(f'v_add_f32_dpp v{v}, v{v}, v{v} {dpp} {DPPM}')
    for sw in ('v_permlane16_swap_b32', 'v_permlane32_swap_b32'):
        for v, t in zip(vs, ts):
            a(f'v_mov_b32 v{t}, v{v}')
        for v, t in zip(vs, ts):
            a(f'{sw} v{v}, v{t}')
        for v, t in zip(vs, ts):
            a(f'v_add_f32 v{v}, v{v}, v{t}')

def reduce_q8(vs, ts):
    for v in vs:
        a(f'v_add_f32_dpp v{v}, v{v}, v{v} row_ror:8 {DPPM}')
    for sw in ('v_permlane16_swap_b32', 'v_permlane32_swap_b32'):
        for v, t in zip(vs, ts):
            a(f'v_mov_b32 v{t}, v{v}')
        for v, t in zip(vs, ts):
            a(f'{sw} v{v}, v{t}')
        for v, t in zip(vs, ts):
            a(f'v_add_f32 v{v}, v{v}, v{t}')

def round_bf16_1(v):
    a(f'v_cvt_pk_bf16_f32 v{v}, v{v}, v{v}')
    a(f'v_lshlrev_b32 v{v}, 16, v{v}')

def sd_from_var(v):
    round_bf16_1(v)
    a(f'v_add_f32 v{v}, {fbits(1e-5)}, v{v}')
    round_bf16_1(v)
    a(f'v_sqrt_f32 v{v}, v{v}')
    round_bf16_1(v)

def cexp(dre, dim, lr2, li, p, t0, t1, t2):
    a(f's_mov_b32 s61, {fbits(float(p))}')
    a(f'v_mul_f32 v{t0}, s61, v{lr2}')
    a(f'v_exp_f32 v{t0}, v{t0}')
    a(f'v_mul_f32 v{t1}, s61, v{li}')
    a(f'v_mul_f32 v{t2}, s62, v{t1}')
    a(f'v_fma_f32 v{dre}, v{t1}, s62, -v{t2}')
    a(f'v_fmac_f32 v{dre}, s63, v{t1}')
    a(f'v_fract_f32 v{t2}, v{t2}')
    a(f'v_add_f32 v{t2}, v{t2}, v{dre}')
    a(f'v_cos_f32 v{dre}, v{t2}')
    a(f'v_sin_f32 v{dim}, v{t2}')
    a(f'v_mul_f32 v{dre}, v{dre}, v{t0}')
    a(f'v_mul_f32 v{dim}, v{dim}, v{t0}')

def cmul(dr, di, ar, ai, br, bi):
    a(f'v_mul_f32 v{dr}, v{ar}, v{br}')
    a(f'v_mul_f32 v{di}, v{ar}, v{bi}')
    a(f'v_fma_f32 v{dr}, -v{ai}, v{bi}, v{dr}')
    a(f'v_fmac_f32 v{di}, v{ai}, v{br}')

def put(row, re, im, tmp, addr, neg=False):
    a(f'v_cvt_pk_bf16_f32 v{tmp}, v{re}, {"-" if neg else ""}v{im}')
    a(f'ds_write_b32 v{addr}, v{tmp} offset:{row*RS}')

def poll_loop(label, loads, check, spin_s='s60'):
    a(f's_movk_i32 {spin_s}, {OPT["spin"]}')
    a(f'{label}:')
    loads()
    a('s_waitcnt vmcnt(0)')
    check()
    a('s_and_b64 exec, exec, vcc')
    a(f's_cbranch_execz {label}_D')
    a(f's_sub_u32 {spin_s}, {spin_s}, 1')
    a(f's_cmp_gt_i32 {spin_s}, 0')
    a('s_sleep 1')
    a(f's_cbranch_scc1 {label}')
    a(f'{label}_D:')

def allreduce32_add(vs, ts):
    for dpp in ('quad_perm:[1,0,3,2]', 'quad_perm:[2,3,0,1]', 'row_half_mirror', 'row_mirror'):
        for v in vs:
            a(f'v_add_f32_dpp v{v}, v{v}, v{v} {dpp} {DPPM}')
    for v, t in zip(vs, ts):
        a(f'v_mov_b32 v{t}, v{v}')
    for v, t in zip(vs, ts):
        a(f'v_permlane16_swap_b32 v{v}, v{t}')
    for v, t in zip(vs, ts):
        a(f'v_add_f32 v{v}, v{v}, v{t}')

def reduce_g(vs, ts):
    for sw in ('v_permlane16_swap_b32', 'v_permlane32_swap_b32'):
        for v, t in zip(vs, ts):
            a(f'v_mov_b32 v{t}, v{v}')
        for v, t in zip(vs, ts):
            a(f'{sw} v{v}, v{t}')
        for v, t in zip(vs, ts):
            a(f'v_add_f32 v{v}, v{v}, v{t}')

def poll2(label, loads, check, full='-1', skip=None):
    a(f's_movk_i32 s60, {OPT["spin"]}')
    if skip:
        a(skip)
        a('s_cselect_b32 s61, 0, 1')
    else:
        a('s_mov_b32 s61, 0')
    a(f'{label}:')
    loads()
    a('s_waitcnt vmcnt(0)')
    check()
    a('s_and_b64 exec, exec, vcc')
    a(f's_cbranch_execz {label}_D')
    a('s_sub_u32 s60, s60, 1')
    a('s_cmp_gt_i32 s60, 0')
    a(f's_sleep {OPT["pre_sleep"]}')
    a(f's_cbranch_scc1 {label}')
    a(f'{label}_D:')
    a(f's_mov_b64 exec, {full}')
    a('s_xor_b32 s61, s61, 1')
    a(f's_cbranch_scc1 {label}')

def tag_poll(label, vaddr, soff, vt):
    def ld():
        a(f'buffer_load_dword v{vt}, v{vaddr}, s[40:43], {soff} offen sc1')
    def ck():
        a(f'v_cmp_ne_u32 vcc, s39, v{vt}')
    poll_loop(label, ld, ck)
    a('s_mov_b64 exec, -1')

def chk4(r, t=28):
    def f():
        a(f'v_max_u32 v{t}, v{r}, v{r+1}')
        a(f'v_max3_u32 v{t}, v{t}, v{r+2}, v{r+3}')
        a(f'v_cmp_eq_u32 vcc, -1, v{t}')
    return f
def chk8(r, t0, t1):
    def f():
        a(f'v_max3_u32 v{t0}, v{r}, v{r+1}, v{r+2}')
        a(f'v_max3_u32 v{t1}, v{r+3}, v{r+4}, v{r+5}')
        a(f'v_max3_u32 v{t0}, v{t0}, v{r+6}, v{r+7}')
        a(f'v_max_u32 v{t0}, v{t0}, v{t1}')
        a(f'v_cmp_eq_u32 vcc, -1, v{t0}')
    return f

KN = NAME + '_kernel'
a('.text'); a(f'.globl {KN}'); a('.p2align 8'); a(f'.type {KN},@function'); a(f'{KN}:')
a(f's_cmp_ge_u32 s2, {NWG}')
a('s_cbranch_scc1 END')
a('s_load_dwordx16 s[4:19], s[0:1], 0')
a('s_load_dwordx16 s[20:35], s[0:1], 64')
a('s_load_dwordx2 s[36:37], s[0:1], 128')
if PROF:
    a('s_memrealtime s[76:77]')
    a('s_memtime s[70:71]')
    a('s_waitcnt lgkmcnt(0)')
    a('v_mov_b32 v163, s70')
    a('s_memrealtime s[70:71]')
    a('s_waitcnt lgkmcnt(0)')
    a('s_mov_b32 s3, s70')
    for i in range(78, 100):
        a(f's_mov_b32 s{i}, 0')
a('v_lshrrev_b32 v2, 6, v0')
a('v_and_b32 v1, 63, v0')
a('v_readfirstlane_b32 s38, v2')
a('v_lshlrev_b32 v3, 4, v0')
a('s_and_b32 s52, s2, 7')
a('s_mul_i32 s52, s52, 24')
a('s_lshr_b32 s53, s2, 3')
a('s_add_u32 s52, s52, s53')
a('s_and_b32 s54, s2, 7')
a('s_mul_i32 s54, s54, 6')
a('s_sub_u32 s53, s53, 24')
a('s_add_u32 s53, s53, s54')
PZ = 164
for r in range(4):
    a(f'v_mov_b32 v{PZ+r}, -1')
    a(f'v_mov_b32 v{8+r}, 0')
a('s_mov_b32 s42, 0x10000000'); a('s_mov_b32 s43, 0x00020000')
a('s_cmp_ge_u32 s2, 192')
a('s_cbranch_scc1 FFN0')
a(f'v_add_u32 v12, {MISC}, v3')
a('v_cmp_gt_u32 vcc, 4, v0')
a('s_and_saveexec_b64 s[70:71], vcc')
a('ds_write_b128 v12, v[8:11]')
a('s_mov_b64 exec, s[70:71]')
a('v_lshrrev_b32 v12, 5, v0')
a(f's_movk_i32 s54, {US}')
a('v_mul_lo_u32 v12, v12, s54')
a('v_and_b32 v13, 31, v0')
a('v_lshl_add_u32 v12, v13, 4, v12')
a(f'v_add_u32 v12, {U0+4096}, v12')
a('v_cmp_gt_u32 vcc, 0x60, v0')
a('s_and_saveexec_b64 s[70:71], vcc')
a('ds_write_b128 v12, v[8:11]')
a('s_mov_b64 exec, s[70:71]')
a('s_lshr_b32 s65, s38, 2')
a('s_mul_i32 s66, s52, 3')
a('s_add_u32 s66, s66, s65')
a('s_and_b32 s67, s38, 1')
a('s_lshl_b32 s67, s67, 6')
a('v_add_u32 v14, s67, v1')
a('s_lshl_b32 s67, s66, 8')
a('v_lshl_add_u32 v15, v14, 1, s67')
a('s_lshl_b32 s67, s66, 1')
a('v_mov_b32 v16, s67')
a('s_lshl_b32 s64, s2, 4')
a('s_lshl_b32 s67, s38, 1')
a('s_add_u32 s64, s64, s67')
a('v_lshrrev_b32 v2, 5, v1')
a('v_add_u32 v2, s64, v2')
a('s_movk_i32 s67, 1152')
a('v_mul_lo_u32 v2, v2, s67')
a('v_lshl_add_u32 v2, v13, 2, v2')
XC = 140
a('v_subrev_u32 v17, 0x100, v0')
a(f's_movk_i32 s67, {4*1152}')
a('v_mul_lo_u32 v17, v17, s67')
a('s_mul_i32 s67, s52, 6')
a('s_and_b32 s67, s67, 0xfffc')
a('v_add_u32 v17, s67, v17')
a('s_lshr_b32 s59, s2, 7')
a('s_lshr_b32 s58, s38, 3')
a('s_or_b32 s59, s59, s58')
a('s_lshl_b32 s57, s2, 6')
a(f's_add_u32 s57, s57, {WS_KEYS}')
a('s_waitcnt lgkmcnt(0)')
a(f's_load_dword s39, s[36:37], {WS_EPOCH}')
a('s_mov_b32 s40, s36'); a('s_mov_b32 s41, s37')
a('global_load_ushort v30, v16, s[18:19]')
a('global_load_ushort v31, v15, s[6:7]')
a('global_load_ushort v32, v15, s[8:9]')
a('global_load_ushort v33, v15, s[10:11]')
a('global_load_ushort v34, v15, s[12:13]')
a('global_load_ushort v35, v15, s[14:15]')
a('global_load_ushort v36, v15, s[16:17]')
a('global_load_ushort v161, v16, s[20:21]')
XR = 60
a('s_cmp_lg_u32 s59, 0')
a('s_cbranch_scc1 P_NOROW')
for i in range(9):
    a(f'global_load_dword v{XR+i}, v2, s[4:5] offset:{128*i}')
srd_ws(72, 57, 64)
a(f'buffer_store_dwordx4 v[{PZ}:{PZ+3}], v3, s[72:75], 0 offen sc1')
a('P_NOROW:')
def col_loads():
    a('s_cmp_lt_u32 s38, 4')
    a('s_cbranch_scc1 P_NOCOL')
    for k in range(4):
        a(f'global_load_dwordx2 v[{XC+2*k}:{XC+2*k+1}], v17, s[4:5] offset:{1152*k}' + ['', ' nt', ' sc1', ' sc0 sc1'][OPT['colmod']])
    a('P_NOCOL:')
if OPT['colpos'] == 0: col_loads()
GA = 150
a('v_and_b32 v18, 0xff, v0')
a('v_lshlrev_b32 v18, 3, v18')
a(f's_mul_i32 s67, s65, {KVS}')
a(f's_add_u32 s67, s67, {KV0}')
a(f's_sub_u32 s68, s67, {17024*4}')
a('v_cmp_gt_u32 vcc, 0x80, v18')
for e in range(0, 12, 2):
    a(f'v_add_u32 v26, {e}, v18')
    a(f'v_add_u32 v27, {e+1}, v18')
    a('v_cvt_f32_u32 v28, v26')
    a('v_cvt_f32_u32 v29, v27')
    a('v_cvt_pk_bf16_f32 v28, v28, v29')
    a('v_lshrrev_b32 v29, 16, v28')
    a('v_and_b32 v28, 0xffff, v28')
    a('v_lshl_add_u32 v28, v28, 2, s68')
    a('v_lshl_add_u32 v29, v29, 2, s68')
    a('v_lshl_add_u32 v26, v26, 2, s67')
    a('v_lshl_add_u32 v27, v27, 2, s67')
    a(f'v_cndmask_b32 v{GA+e}, v28, v26, vcc')
    if e + 1 < 11:
        a(f'v_cndmask_b32 v{GA+e+1}, v29, v27, vcc')
a('s_barrier')
if OPT['colpos'] == 0:
    a('s_cmp_lt_u32 s38, 4')
    a('s_cbranch_scc1 C_W0')
    a('s_waitcnt vmcnt(4) lgkmcnt(0)')
    a('s_branch C_W1')
    a('C_W0:')
a('s_waitcnt vmcnt(0) lgkmcnt(0)')
a('C_W1:')
if OPT['colpos'] == 1: col_loads()
a('s_add_u32 s39, s39, 1')
a('s_cmp_lg_u32 s59, 0')
a('s_cbranch_scc1 C_KGEN')
X = 70
for i in range(9):
    a(f'v_lshlrev_b32 v{X+2*i}, 16, v{XR+i}')
    a(f'v_and_b32 v{X+2*i+1}, 0xffff0000, v{XR+i}')
a(f'v_add_f32 v26, v{X}, v{X+1}')
a(f'v_add_f32 v27, v{X+2}, v{X+3}')
for i in range(4, 18, 2):
    a(f'v_add_f32 v26, v26, v{X+i}')
    a(f'v_add_f32 v27, v27, v{X+i+1}')
a('v_add_f32 v26, v26, v27')
allreduce32_add([26], [27])
a(f'v_mul_f32 v26, {fbits(1.0/576)}, v26')
for i in range(0, 18, 2):
    a(f'v_sub_f32 v{X+i}, v{X+i}, v26')
    a(f'v_sub_f32 v{X+i+1}, v{X+i+1}, v26')
    if i == 0:
        a(f'v_mul_f32 v27, v{X}, v{X}')
        a(f'v_mul_f32 v28, v{X+1}, v{X+1}')
    else:
        a(f'v_fmac_f32 v27, v{X+i}, v{X+i}')
        a(f'v_fmac_f32 v28, v{X+i+1}, v{X+i+1}')
a('v_add_f32 v27, v27, v28')
allreduce32_add([27], [28])
a(f'v_mul_f32 v27, {fbits(1.0/576)}, v27')
sd_from_var(27)
a('v_cvt_pk_bf16_f32 v26, v26, v27')
a('s_lshl_b32 s67, s38, 4')
a(f's_add_u32 s67, s67, {M_GRAN}')
a('v_lshrrev_b32 v28, 5, v1')
a('v_lshl_add_u32 v28, v28, 3, s67')
a('v_mov_b32 v27, s39')
a('v_mov_b32 v29, 1')
a(f'v_mov_b32 v37, {M_CNT}')
a('s_mov_b32 exec_lo, 1')
a('s_mov_b32 exec_hi, 1')
a('ds_write_b64 v28, v[26:27]')
a('s_mov_b32 exec_hi, 0')
a('ds_add_rtn_u32 v29, v37, v29')
a('s_mov_b64 exec, -1')
a('v_lshlrev_b32 v28, 4, v1')
a(f'v_add_u32 v37, {M_GRAN}, v28')
a('s_lshl_b32 s68, s2, 7')
a(f's_add_u32 s68, s68, {WS_STATS}')
a('s_waitcnt lgkmcnt(0)')
a('v_readfirstlane_b32 s67, v29')
a('s_cmp_lg_u32 s67, 7')
a('s_cbranch_scc1 C_KGEN')
a('s_mov_b64 exec, 0xff')
a('ds_read_b128 v[40:43], v37')
a('s_waitcnt lgkmcnt(0)')
a('buffer_store_dwordx4 v[40:43], v28, s[40:43], s68 offen sc1')
a('s_mov_b64 exec, -1')
a('C_KGEN:')
stamp(1)
if OPT['colpos'] == 2: col_loads()
hi, lo = split2(INV2PI)
a(f's_mov_b32 s62, {fbits(hi)}')
a(f's_mov_b32 s63, {fbits(lo)}')
a(f's_mul_i32 s67, s65, {64*RS}')
a('v_lshl_add_u32 v4, v14, 2, s67')
lh, ll = split2(LOG2E)
a('v_lshlrev_b32 v30, 16, v30')
a(f's_mov_b32 s68, {fbits(lh)}')
a(f's_mov_b32 s69, {fbits(ll)}')
a('v_mul_f32 v20, s68, v30')
a('v_fma_f32 v21, v30, s68, -v20')
a('v_fmac_f32 v21, s69, v30')
a('v_exp_f32 v20, v20')
a(f'v_mul_f32 v21, {fbits(0.6931471805599453)}, v21')
a('v_fma_f32 v20, v20, v21, v20')
round_bf16_1(20)
for r in range(6):
    a(f'v_lshlrev_b32 v{11+r if r < 3 else 8+r+6}, 16, v{31+r}' if False else f'v_lshlrev_b32 v{31+r}, 16, v{31+r}')
a('v_mul_f32 v11, v31, v20')
a('v_mul_f32 v12, v32, v20')
a('v_mul_f32 v13, v33, v20')
a('v_mul_f32 v10, v34, v20')
a('v_mul_f32 v11, s68, v11')
cmul(22, 23, 35, 36, 13, 10)
cexp(24, 25, 11, 12, 128, 30, 31, 32)
if OPT['colpos'] == 3: col_loads()
a('s_bitcmp1_b32 s38, 1')
a('s_cbranch_scc1 C_ROLE1')
cexp(26, 27, 11, 12, 8, 30, 31, 32)
cexp(28, 29, 11, 12, 1024, 30, 31, 32)
cmul(34, 35, 22, 23, 28, 29)
a('v_mov_b32 v36, 1.0')
a('v_mov_b32 v37, 0')
put(48, 36, 37, 40, 4, True)
put(49, 26, 27, 41, 4, True)
put(32, 34, 35, 42, 4)
fr, fi, gr, gi = 26, 27, 36, 37
a('v_mov_b32 v44, v26')
a('v_mov_b32 v45, v27')
ar, ai, br, bi = 34, 35, 38, 39
for j in range(2, 16):
    cmul(gr, gi, fr, fi, 44, 45)
    if j - 1 <= 8:
        cmul(br, bi, ar, ai, 24, 25)
    put(48 + j, gr, gi, 40, 4, True)
    if j - 1 <= 8:
        put(32 + j - 1, br, bi, 41, 4)
        ar, ai, br, bi = br, bi, ar, ai
    fr, fi, gr, gi = gr, gi, fr, fi
a('s_branch C_MFMA')
a('C_ROLE1:')
cexp(26, 27, 11, 12, 1, 30, 31, 32)
cexp(28, 29, 11, 12, 2, 30, 31, 32)
cexp(44, 45, 11, 12, 4, 30, 31, 32)
a('v_mov_b32 v50, v22')
a('v_mov_b32 v51, v23')
for i in range(1, 8):
    cmul(50 + 2 * i, 51 + 2 * i, 48 + 2 * i, 49 + 2 * i, 24, 25)
def row_of(i, e):
    if i < 2: return e + 8 * i
    if i < 4: return 16 + e + 4 * (i - 2)
    return 24 + e + 2 * (i - 4)
for i in range(8):
    put(row_of(i, 0), 50 + 2 * i, 51 + 2 * i, 40 + (i & 1), 4)
for i in range(4, 8):
    cmul(34, 35, 50 + 2 * i, 51 + 2 * i, 44, 45)
    put(row_of(i, 1), 34, 35, 40 + (i & 1), 4)
cur = {i: (50 + 2 * i, 51 + 2 * i) for i in range(4)}
alt = {i: (70 + 2 * i, 71 + 2 * i) for i in range(4)}
for e in range(1, 8):
    for i in range(4):
        if i >= 2 and e > 3: continue
        m = (26, 27) if i < 2 else (28, 29)
        cmul(alt[i][0], alt[i][1], cur[i][0], cur[i][1], m[0], m[1])
    for i in range(4):
        if i >= 2 and e > 3: continue
        put(row_of(i, e), alt[i][0], alt[i][1], 40 + (i & 1), 4)
        cur[i], alt[i] = alt[i], cur[i]
a('C_MFMA:')
a('v_and_b32 v5, 15, v0')
a('v_bfe_u32 v6, v0, 4, 2')
a(f's_movk_i32 s68, {RS}')
a('v_mul_lo_u32 v7, v5, s68')
a('v_lshl_add_u32 v7, v6, 4, v7')
a('v_add_u32 v7, s67, v7')
a('s_and_b32 s69, s38, 3')
a(f's_mul_i32 s68, s69, {16*RS}')
a('v_add_u32 v8, s68, v7')
a(f's_mul_i32 s67, s65, {KVS}')
a(f's_add_u32 s67, s67, {KV0}')
a('s_waitcnt lgkmcnt(0)')
a('s_barrier')
stamp(2)
a('s_cmp_ge_u32 s69, 3')
a('s_cbranch_scc1 C_EXPAND')
for kb in range(8):
    a(f'ds_read_b128 v[{16+8*kb}:{19+8*kb}], v8 offset:{kb*64}')
    a(f'ds_read_b128 v[{20+8*kb}:{23+8*kb}], v7 offset:{48*RS+kb*64}')
for r in range(4):
    a(f'v_mov_b32 v{12+r}, 0')
for kb in range(8):
    a(f's_waitcnt lgkmcnt({14-2*kb})')
    a(f'v_mfma_f32_16x16x32_bf16 v[12:15], v[{16+8*kb}:{19+8*kb}], v[{20+8*kb}:{23+8*kb}], v[12:15]')
a('s_cmp_eq_u32 s69, 1')
a('s_cbranch_scc1 C_T1')
a('s_cmp_eq_u32 s69, 2')
a('s_cbranch_scc1 C_T2')
a('v_and_b32 v9, 1, v6')
a('v_lshlrev_b32 v9, 4, v9')
a('v_lshrrev_b32 v10, 1, v6')
a('v_lshl_add_u32 v9, v10, 9, v9')
a('v_lshl_add_u32 v9, v5, 5, v9')
a('v_add_u32 v9, s67, v9')
a('s_nop 3')
a(f'ds_write_b128 v9, v[12:15]')
a('s_branch C_EXPAND')
a('C_T1:')
a('v_lshlrev_b32 v9, 8, v6')
a('v_add_u32 v9, s67, v9')
a('v_lshl_add_u32 v10, v5, 4, v9')
a('v_lshl_add_u32 v11, v5, 3, v9')
a('v_cmp_gt_u32 vcc, 2, v6')
a('v_cndmask_b32 v9, v11, v10, vcc')
a('v_mov_b32 v10, 0x80')
a('v_cndmask_b32 v10, v10, 8, vcc')
a('v_add_u32 v10, v10, v9')
a(f'ds_write_b64 v9, v[12:13] offset:1024')
a(f'ds_write_b64 v10, v[14:15] offset:1024')
a('s_branch C_EXPAND')
a('C_T2:')
a('v_lshlrev_b32 v9, 8, v6')
a('v_lshl_add_u32 v9, v5, 2, v9')
a('v_add_u32 v9, s67, v9')
a('s_nop 5')
for r in range(4):
    a(f'ds_write_b32 v9, v{12+r} offset:{2048+64*r}')
a('C_EXPAND:')
a('v_and_b32 v9, 0xff, v0')
a(f's_mul_i32 s68, s65, {4*KHS}')
a('v_lshl_add_u32 v9, v9, 4, s68')
a('v_subrev_u32 v17, 0x100, v0')
a('v_lshlrev_b32 v17, 5, v17')
a(f's_movk_i32 s64, {WS_STATS}')
a('s_waitcnt lgkmcnt(0)')
a('s_barrier')
stamp(3)
def expand(ga, addr, off):
    for e in range(11):
        a(f'ds_read_b32 v{20+e}, v{ga+e}')
    a('s_waitcnt lgkmcnt(0)')
    for k in range(4):
        a(f'v_cvt_pk_bf16_f32 v{32+k}, v{20+2*k}, v{21+2*k}')
    a(f'ds_write_b128 v{addr}, v[32:35] offset:{off}')
    for k in range(4):
        a(f'v_cvt_pk_bf16_f32 v{40+k}, v{21+2*k}, v{22+2*k}')
    a(f'ds_write_b128 v{addr}, v[40:43] offset:{off+KHS}')
    for k in range(4):
        a(f'v_cvt_pk_bf16_f32 v{36+k}, v{22+2*k}, v{23+2*k}')
    a(f'ds_write_b128 v{addr}, v[36:39] offset:{off+2*KHS}')
    for k in range(4):
        a(f'v_cvt_pk_bf16_f32 v{44+k}, v{23+2*k}, v{24+2*k}')
    a(f'ds_write_b128 v{addr}, v[44:47] offset:{off+3*KHS}')
expand(GA, 9, 32)
a('s_and_b32 s69, s38, 3')
a('s_cmp_lg_u32 s69, 0')
a('s_cbranch_scc1 C_NOFRONT')
for e in range(11):
    a(f'v_mov_b32 v{GA+e}, {M_ZERO}')
a('s_mov_b64 exec, 2')
for e in range(8, 11):
    a(f'v_mov_b32 v{GA+e}, s67')
    if e > 8:
        a(f'v_add_u32 v{GA+e}, {4*(e-8)}, v{GA+e}')
a('s_mov_b64 exec, 3')
expand(GA, 9, 0)
a('s_mov_b64 exec, -1')
a('C_NOFRONT:')
a('s_cmp_lt_u32 s38, 4')
a('s_cbranch_scc1 C_NOU')
def st_loads():
    a('buffer_load_dwordx4 v[20:23], v17, s[40:43], s64 offen sc1')
    a('buffer_load_dwordx4 v[24:27], v17, s[40:43], s64 offen offset:16 sc1')
def st_check():
    a('v_xor_b32 v28, s39, v21')
    a('v_xor_b32 v29, s39, v23')
    a('v_xor_b32 v30, s39, v25')
    a('v_xor_b32 v31, s39, v27')
    a('v_or3_b32 v28, v28, v29, v30')
    a('v_or_b32 v28, v28, v31')
    a('v_cmp_ne_u32 vcc, 0, v28')
poll_loop('C_STP', st_loads, st_check)
a('s_mov_b64 exec, -1')
stamp(4)
a('s_bitcmp1_b32 s52, 0')
a('s_cselect_b32 s68, 16, 0')
for k in range(4):
    ms = 20 + 2 * k
    a(f'v_alignbit_b32 v{32+k}, v{XC+2*k+1}, v{XC+2*k}, s68')
    a(f'v_lshrrev_b32 v{36+k}, s68, v{XC+2*k+1}')
    a(f'v_and_b32 v{ms+1}, 0xffff0000, v{ms}')
    a(f'v_lshlrev_b32 v{ms}, 16, v{ms}')
    a(f'v_rcp_f32 v{ms+1}, v{ms+1}')
for k in range(4):
    ms = 20 + 2 * k
    a(f'v_lshlrev_b32 v{40+k}, 16, v{32+k}')
    a(f'v_and_b32 v{44+k}, 0xffff0000, v{32+k}')
    a(f'v_lshlrev_b32 v{48+k}, 16, v{36+k}')
    for c in range(3):
        a(f'v_sub_f32 v{40+4*c+k}, v{40+4*c+k}, v{ms}')
for c in range(3):
    for k in range(0, 4, 2):
        r = 40 + 4 * c + k
        a(f'v_cvt_pk_bf16_f32 v{r+1}, v{r}, v{r+1}')
        a(f'v_lshlrev_b32 v{r}, 16, v{r+1}')
        a(f'v_and_b32 v{r+1}, 0xffff0000, v{r+1}')
        a(f'v_mul_f32 v{r}, v{r}, v{21+2*k}')
        a(f'v_mul_f32 v{r+1}, v{r+1}, v{23+2*k}')
a('v_lshrrev_b32 v17, 2, v17')
a(f'v_sub_u32 v17, {U0+4088}, v17')
for c in range(3):
    r = 40 + 4 * c
    a(f'v_cvt_pk_bf16_f32 v{32+2*c}, v{r+3}, v{r+2}')
    a(f'v_cvt_pk_bf16_f32 v{33+2*c}, v{r+1}, v{r}')
    a(f'ds_write_b64 v17, v[{32+2*c}:{33+2*c}] offset:{c*US}')
a('C_NOU:')
a('v_add_u32 v7, 1, v5')
a('v_and_b32 v8, 3, v7')
a('v_sub_u32 v7, v7, v8')
a('v_lshl_add_u32 v7, v6, 3, v7')
a('v_lshlrev_b32 v7, 1, v7')
a(f's_movk_i32 s68, {KHS}')
a('v_mul_lo_u32 v8, v8, s68')
a('v_add_u32 v7, v7, v8')
a('s_and_b32 s69, s38, 1')
a('s_lshl_b32 s69, s69, 8')
a(f's_mul_i32 s68, s65, {4*KHS}')
a('s_add_u32 s68, s68, s69')
a('v_add_u32 v7, s68, v7')
a('v_lshlrev_b32 v8, 5, v5')
a('v_sub_u32 v8, 480, v8')
a('v_lshl_add_u32 v8, v6, 4, v8')
a(f's_mul_i32 s64, s65, {US}')
a(f's_add_u32 s64, s64, {U0}')
a('s_add_u32 s68, s64, s69')
a('v_add_u32 v8, s68, v8')
ACC = 144
for r in range(16):
    a(f'v_mov_b32 v{ACC+r}, 0')
a('s_waitcnt lgkmcnt(0)')
a('s_barrier')
stamp(5)
a(f's_mul_i32 s54, s52, 12288')
a(f's_add_u32 s54, s54, {WS_YY}')
a(f'buffer_store_dwordx4 v[{PZ}:{PZ+3}], v3, s[40:43], s54 offen sc1')
a('s_cmp_ge_u32 s2, 128')
a('s_cbranch_scc1 C_NOZP')
a('s_mul_i32 s56, s2, 18432')
a(f's_add_u32 s56, s56, {WS_Z}')
srd_ws(72, 56, 18432)
a('s_movk_i32 s56, 12288')
a(f'buffer_store_dwordx4 v[{PZ}:{PZ+3}], v3, s[72:75], 0 offen sc1')
a(f'buffer_store_dwordx4 v[{PZ}:{PZ+3}], v3, s[72:75], s56 offen sc1')
a('s_cmp_ge_u32 s2, 8')
a('s_cbranch_scc1 C_NOZP')
a('s_mul_i32 s56, s2, 1152')
a(f's_add_u32 s56, s56, {WS_H}')
srd_ws(72, 56, 1152)
a(f'buffer_store_dwordx4 v[{PZ}:{PZ+3}], v3, s[72:75], 0 offen sc1')
a('C_NOZP:')
FA = [16, 80]; FB = [48, 112]
def conv_body(Js, nq):
    def ld(q, c, st):
        return [f'ds_read_b64 v[{FA[st]+4*q}:{FA[st]+4*q+1}], v7 offset:{512*q+64*c}',
                f'ds_read_b64 v[{FA[st]+4*q+2}:{FA[st]+4*q+3}], v7 offset:{512*q+64*c+8}',
                f'ds_read_b128 v[{FB[st]+4*q}:{FB[st]+4*q+3}], v8 offset:{512*(7-q)+64*c}']
    def mf(qa, dl, st):
        t = Js.index(qa + dl)
        return (f'v_mfma_f32_16x16x32_bf16 v[{ACC+4*t}:{ACC+4*t+3}], v[{FA[st]+4*qa}:{FA[st]+4*qa+3}], '
                f'v[{FB[st]+4*dl}:{FB[st]+4*dl+3}], v[{ACC+4*t}:{ACC+4*t+3}]')
    pairs = sorted([(qa, J - qa) for J in Js for qa in range(J + 1)], key=lambda p: (max(p), p))
    for q in range(nq):
        for x in ld(q, 0, 0): a(x)
    for c in range(4):
        st = c & 1
        nxt = [x for q in range(nq) for x in ld(q, c + 1, st ^ 1)] if c < 3 else []
        lastq = -1
        for n, (qa, dl) in enumerate(pairs):
            if c == 0 and max(qa, dl) != lastq:
                lastq = max(qa, dl)
                a(f's_waitcnt lgkmcnt({min(15, 3*(nq-1-lastq))})')
            a(mf(qa, dl, st))
            if c > 0 or lastq == nq - 1:
                for _ in range(3 if c == 0 else 2):
                    if nxt: a(nxt.pop(0))
        while nxt: a(nxt.pop(0))
        if c < 3:
            a('s_waitcnt lgkmcnt(0)')
a('s_bitcmp1_b32 s38, 1')
a('s_cbranch_scc1 C_JS1')
JSET = [[7, 6, 1, 0], [5, 4, 3, 2]]
conv_body(JSET[0], 8)
a('s_bitcmp1_b32 s38, 0')
a(f's_cselect_b32 s66, {JSET[0][2]}, {JSET[0][0]}')
a(f's_cselect_b32 s67, {JSET[0][3]}, {JSET[0][1]}')
a('s_branch C_RED')
a('C_JS1:')
conv_body(JSET[1], 6)
a('s_bitcmp1_b32 s38, 0')
a(f's_cselect_b32 s66, {JSET[1][2]}, {JSET[1][0]}')
a(f's_cselect_b32 s67, {JSET[1][3]}, {JSET[1][1]}')
a('C_RED:')
stamp(6)
a('s_lshl_b32 s68, s38, 11')
a(f's_add_u32 s68, s68, {RED}')
a('v_lshl_add_u32 v9, v1, 4, s68')
a('s_xor_b32 s68, s68, 2048') if False else None
a('s_xor_b32 s69, s38, 1')
a('s_lshl_b32 s69, s69, 11')
a(f's_add_u32 s69, s69, {RED}')
a('v_lshl_add_u32 v10, v1, 4, s69')
a('s_bitcmp1_b32 s38, 0')
a('s_cbranch_scc1 C_RH1')
a(f'ds_write_b128 v9, v[{ACC+8}:{ACC+11}]')
a(f'ds_write_b128 v9, v[{ACC+12}:{ACC+15}] offset:1024')
for r in range(8):
    a(f'v_mov_b32 v{16+r}, v{ACC+r}')
a('s_branch C_RH2')
a('C_RH1:')
a(f'ds_write_b128 v9, v[{ACC}:{ACC+3}]')
a(f'ds_write_b128 v9, v[{ACC+4}:{ACC+7}] offset:1024')
for r in range(8):
    a(f'v_mov_b32 v{16+r}, v{ACC+8+r}')
a('C_RH2:')
a('v_lshlrev_b32 v11, 5, v5')
a('v_lshl_add_u32 v11, v6, 3, v11')
a('s_add_u32 s64, s64, 4088')
a('s_lshl_b32 s68, s66, 9')
a('s_sub_u32 s68, s64, s68')
a('v_sub_u32 v12, s68, v11')
a('s_lshl_b32 s68, s67, 9')
a('s_sub_u32 s68, s64, s68')
a('v_sub_u32 v13, s68, v11')
a('v_lshrrev_b32 v14, 1, v6')
a('v_lshl_add_u32 v14, v5, 1, v14')
a('v_mul_u32_u24 v14, 48, v14')
a('v_and_b32 v15, 1, v6')
a('v_lshl_add_u32 v14, v15, 3, v14')
a('s_lshl_b32 s68, s65, 4')
a(f's_add_u32 s68, s68, {STG}')
a(f's_mul_i32 s69, s66, {32*48}')
a('s_add_u32 s69, s69, s68')
a('v_add_u32 v15, s69, v14')
a(f's_mul_i32 s69, s67, {32*48}')
a('s_add_u32 s69, s69, s68')
a('v_add_u32 v14, s69, v14')
a('v_lshlrev_b32 v161, 16, v161')
a('ds_read_b64 v[32:33], v12')
a('ds_read_b64 v[34:35], v13')
a('s_waitcnt vmcnt(0) lgkmcnt(0)')
a('s_barrier')
a('s_cmp_lg_u32 s38, 11')
a('s_cbranch_scc1 C_NOYF')
a('s_lshl_b32 s68, s52, 2')
a(f's_add_u32 s68, s68, {WS_YF}')
a('v_mov_b32 v162, s39')
a('v_mov_b32 v160, 0')
a('s_mov_b64 exec, 1')
a('buffer_store_dword v162, v160, s[40:43], s68 offen sc1')
a('s_mov_b64 exec, -1')
a('C_NOYF:')
a('ds_read_b128 v[24:27], v10')
a('ds_read_b128 v[28:31], v10 offset:1024')
for jj in range(2):
    U = 32 + 2 * jj
    T = 40 + 4 * jj
    a(f'v_and_b32 v{T}, 0xffff0000, v{U+1}')
    a(f'v_lshlrev_b32 v{T+1}, 16, v{U+1}')
    a(f'v_and_b32 v{T+2}, 0xffff0000, v{U}')
    a(f'v_lshlrev_b32 v{T+3}, 16, v{U}')
    for r in range(4):
        a(f'v_mul_f32 v{T+r}, v{T+r}, v161')
    a(f'v_cvt_pk_bf16_f32 v{T+1}, v{T}, v{T+1}')
    a(f'v_cvt_pk_bf16_f32 v{T+3}, v{T+2}, v{T+3}')
    a(f'v_lshlrev_b32 v{T}, 16, v{T+1}')
    a(f'v_and_b32 v{T+1}, 0xffff0000, v{T+1}')
    a(f'v_lshlrev_b32 v{T+2}, 16, v{T+3}')
    a(f'v_and_b32 v{T+3}, 0xffff0000, v{T+3}')
for jj in range(2):
    A = 16 + 4 * jj
    T = 40 + 4 * jj
    a(f's_waitcnt lgkmcnt({1-jj})')
    for r in range(4):
        a(f'v_add_f32 v{A+r}, v{A+r}, v{24+4*jj+r}')
    a(f'v_cvt_pk_bf16_f32 v{A+1}, v{A}, v{A+1}')
    a(f'v_cvt_pk_bf16_f32 v{A+3}, v{A+2}, v{A+3}')
    a(f'v_lshlrev_b32 v{A}, 16, v{A+1}')
    a(f'v_and_b32 v{A+1}, 0xffff0000, v{A+1}')
    a(f'v_lshlrev_b32 v{A+2}, 16, v{A+3}')
    a(f'v_and_b32 v{A+3}, 0xffff0000, v{A+3}')
    for r in range(4):
        a(f'v_add_f32 v{A+r}, v{A+r}, v{T+r}')
    a(f'v_cvt_pk_bf16_f32 v{36+2*jj}, v{A}, v{A+1}')
    a(f'v_cvt_pk_bf16_f32 v{37+2*jj}, v{A+2}, v{A+3}')
    a(f'v_min_u32 v{36+2*jj}, -2, v{36+2*jj}')
    a(f'v_min_u32 v{37+2*jj}, -2, v{37+2*jj}')
    a(f'ds_write_b64 v{15-jj}, v[{36+2*jj}:{37+2*jj}]')
a(f'v_add_u32 v9, {STG}, v3')
a(f's_mul_i32 s68, s52, 12288')
a(f's_add_u32 s68, s68, {WS_YY}')
a('s_waitcnt lgkmcnt(0)')
a('s_barrier')
a('ds_read_b128 v[16:19], v9')
a('s_waitcnt lgkmcnt(0)')
a('buffer_store_dwordx4 v[16:19], v3, s[40:43], s68 offen sc1')
stamp(7)
a('s_cmp_ge_u32 s2, 128')
a('s_cbranch_scc1 TOP8')
a('s_cmp_ge_u32 s38, 9')
a('s_cbranch_scc1 L_IDLE')
a('s_mov_b32 s65, 43691')
a('v_mul_u32_u24 v9, s65, v0')
a('v_lshrrev_b32 v9, 17, v9')
a('v_lshlrev_b32 v11, 2, v9')
a('s_lshl_b32 s64, s2, 4')
a('v_add_u32 v4, s64, v5')
a('s_movk_i32 s65, 1152')
a('v_mul_lo_u32 v7, v4, s65')
a('s_lshl_b32 s65, s38, 7')
a('v_lshl_add_u32 v8, v6, 5, s65')
a('v_add_u32 v7, v7, v8')
a('global_load_dwordx4 v[12:15], v7, s[4:5]')
a('global_load_dwordx4 v[16:19], v7, s[4:5] offset:16')
a('global_load_dwordx4 v[20:23], v8, s[24:25]')
a('global_load_dwordx4 v[24:27], v8, s[24:25] offset:16')
a('v_mul_u32_u24 v10, 3, v9')
a('v_sub_u32 v10, v0, v10')
a('s_movk_i32 s65, 12288')
a('v_mul_lo_u32 v9, v9, s65')
a('v_lshl_add_u32 v9, v10, 4, v9')
a('s_mul_i32 s65, s2, 96')
a(f's_add_u32 s65, s65, {WS_YY}')
a('v_lshrrev_b32 v10, 2, v5')
a('v_lshl_add_u32 v10, v6, 4, v10')
a('v_lshlrev_b32 v10, 5, v10')
a('v_and_b32 v36, 3, v5')
a('v_lshl_add_u32 v10, v36, 3, v10')
a('s_lshl_b32 s66, s38, 11')
a(f'v_add_u32 v10, s66, v10')
a(f's_movk_i32 s66, {WS_YF}')
tag_poll('L_YF', 11, 's66', 28)
a('v_lshlrev_b32 v11, 5, v0')
def yy_loads():
    a('buffer_load_dwordx4 v[28:31], v9, s[40:43], s65 offen sc1')
    a('buffer_load_dwordx4 v[32:35], v9, s[40:43], s65 offen offset:48 sc1')
poll_loop('L_YP', yy_loads, chk8(28, 36, 37))
a('s_mov_b64 exec, -1')
a(f'ds_write_b128 v11, v[28:31] offset:{YT}')
a(f'ds_write_b128 v11, v[32:35] offset:{YT+16}')
H = 40
for i in range(8):
    a(f'v_lshlrev_b32 v{H+2*i}, 16, v{12+i}')
    a(f'v_and_b32 v{H+2*i+1}, 0xffff0000, v{12+i}')
a('v_mul_u32_u24 v11, 80, v5')
a(f'v_add_u32 v11, {M_EX}, v11')
a('s_lshl_b32 s66, s38, 3')
a('v_add_u32 v9, s66, v11')
a('s_waitcnt lgkmcnt(0)')
a('s_barrier')
stamp(8)
for k in range(4):
    a(f'ds_read_b64_tr_b16 v[{28+2*k}:{29+2*k}], v10 offset:{YT+128*k}')
for i in range(8):
    if i % 2 == 0:
        a(f's_waitcnt lgkmcnt({3-i//2})')
    a(f'v_lshlrev_b32 v36, 16, v{28+i}')
    a(f'v_and_b32 v37, 0xffff0000, v{28+i}')
    a(f'v_add_f32 v{H+2*i}, v{H+2*i}, v36')
    a(f'v_add_f32 v{H+2*i+1}, v{H+2*i+1}, v37')
    a(f'v_cvt_pk_bf16_f32 v{12+i}, v{H+2*i}, v{H+2*i+1}')
    a(f'v_lshlrev_b32 v{H+2*i}, 16, v{12+i}')
    a(f'v_and_b32 v{H+2*i+1}, 0xffff0000, v{12+i}')
for i in range(4):
    a(f'v_add_f32 v{28+i}, v{H+i}, v{H+4+i}')
    a(f'v_add_f32 v{32+i}, v{H+8+i}, v{H+12+i}')
for i in range(4):
    a(f'v_add_f32 v{28+i}, v{28+i}, v{32+i}')
a('v_add_f32 v28, v28, v29')
a('v_add_f32 v30, v30, v31')
a('v_add_f32 v28, v28, v30')
reduce_g([28], [30])
a(f'v_mul_f32 v28, {fbits(1.0/64)}, v28')
for i in range(0, 16, 4):
    for r in range(4):
        a(f'v_sub_f32 v{36+r}, v{H+i+r}, v28')
    for r in range(4):
        a(f'v_mul_f32 v{30+r}, v{36+r}, v{36+r}' if i == 0 else f'v_fmac_f32 v{30+r}, v{36+r}, v{36+r}')
a('v_add_f32 v30, v30, v31')
a('v_add_f32 v32, v32, v33')
a('v_add_f32 v29, v30, v32')
reduce_g([29], [30])
a('s_mov_b64 exec, 0xffff')
a('ds_write_b64 v9, v[28:29]')
a('s_mov_b64 exec, -1')
a('v_mul_u32_u24 v9, 48, v5')
a(f'v_add_u32 v9, {M_EX2}, v9')
a('s_lshl_b32 s66, s38, 2')
a('v_add_u32 v10, s66, v9')
a(f's_mov_b32 s65, {WS_Z}')
a('s_waitcnt lgkmcnt(0)')
a('s_barrier')
E = 60
for k in range(4):
    a(f'ds_read_b128 v[{E+4*k}:{E+4*k+3}], v11 offset:{16*k}')
a(f'ds_read_b64 v[{E+16}:{E+17}], v11 offset:64')
a('s_waitcnt lgkmcnt(0)')
a(f'v_add_f32 v28, v{E}, v{E+2}'); a(f'v_add_f32 v29, v{E+4}, v{E+6}')
a(f'v_add_f32 v30, v{E+8}, v{E+10}'); a(f'v_add_f32 v31, v{E+12}, v{E+14}')
a(f'v_add_f32 v32, v{E+1}, v{E+3}'); a(f'v_add_f32 v33, v{E+5}, v{E+7}')
a(f'v_add_f32 v34, v{E+9}, v{E+11}'); a(f'v_add_f32 v35, v{E+13}, v{E+15}')
a('v_add_f32 v28, v28, v29'); a('v_add_f32 v30, v30, v31')
a('v_add_f32 v32, v32, v33'); a('v_add_f32 v34, v34, v35')
a(f'v_add_f32 v28, v28, v{E+16}'); a(f'v_add_f32 v32, v32, v{E+17}')
a('v_add_f32 v28, v28, v30'); a('v_add_f32 v32, v32, v34')
a(f'v_mul_f32 v28, {fbits(1.0/9)}, v28')
for w in range(9):
    a(f'v_sub_f32 v{E+2*w}, v{E+2*w}, v28')
a(f'v_mul_f32 v33, v{E}, v{E}')
a(f'v_mul_f32 v34, v{E+2}, v{E+2}')
a(f'v_mul_f32 v35, v{E+4}, v{E+4}')
for w in range(3, 9):
    a(f'v_fmac_f32 v{33+w%3}, v{E+2*w}, v{E+2*w}')
round_bf16_1(28)
a('v_add_f32 v33, v33, v34')
a('v_add_f32 v33, v33, v35')
a(f'v_mul_f32 v38, {fbits(1.0/576)}, v32')
a(f'v_fmac_f32 v38, {fbits(1.0/9)}, v33')
a('v_mov_b32 v39, v28')
sd_from_var(38)
a('v_rcp_f32 v38, v38')
for i in range(8):
    x0, x1 = 36, 37
    a(f'v_sub_f32 v{x0}, v{H+2*i}, v39')
    a(f'v_sub_f32 v{x1}, v{H+2*i+1}, v39')
    a(f'v_cvt_pk_bf16_f32 v{x1}, v{x0}, v{x1}')
    a(f'v_lshlrev_b32 v{x0}, 16, v{x1}')
    a(f'v_and_b32 v{x1}, 0xffff0000, v{x1}')
    a(f'v_mul_f32 v{x0}, v{x0}, v38')
    a(f'v_mul_f32 v{x1}, v{x1}, v38')
    a(f'v_cvt_pk_bf16_f32 v{28+i}, v{x0}, v{x1}')
    a(f'v_min_u32 v{28+i}, -2, v{28+i}')
    if i == 3:
        a('buffer_store_dwordx4 v[28:31], v7, s[40:43], s65 offen sc1')
a('buffer_store_dwordx4 v[32:35], v7, s[40:43], s65 offen offset:16 sc1')
for i in range(8):
    a(f'v_lshlrev_b32 v{E+2*i}, 16, v{28+i}')
    a(f'v_and_b32 v{E+2*i+1}, 0xffff0000, v{28+i}')
    a(f'v_lshlrev_b32 v36, 16, v{20+i}')
    a(f'v_and_b32 v37, 0xffff0000, v{20+i}')
    if i == 0:
        a(f'v_mul_f32 v38, v{E}, v36')
        a(f'v_mul_f32 v39, v{E+1}, v37')
    else:
        a(f'v_fmac_f32 v38, v{E+2*i}, v36')
        a(f'v_fmac_f32 v39, v{E+2*i+1}, v37')
a('v_add_f32 v38, v38, v39')
reduce_g([38], [39])
a('s_mov_b64 exec, 0xffff')
a('ds_write_b32 v10, v38')
a('s_mov_b64 exec, -1')
a('s_waitcnt lgkmcnt(0)')
a('s_barrier')
a('s_cmp_lg_u32 s38, 0')
a('s_cbranch_scc1 L_OUT')
a('ds_read_b128 v[28:31], v9')
a('ds_read_b128 v[32:35], v9 offset:16')
a('ds_read_b32 v36, v9 offset:32')
a('v_sub_u32 v37, 0x7ff, v4')
a('v_lshlrev_b32 v38, 2, v4')
a(f's_mov_b32 s65, {WS_KEYS}')
a('s_waitcnt lgkmcnt(0)')
a('v_add_f32 v28, v28, v29'); a('v_add_f32 v30, v30, v31'); a('v_add_f32 v32, v32, v33'); a('v_add_f32 v34, v34, v35')
a('v_add_f32 v28, v28, v30'); a('v_add_f32 v32, v32, v34'); a('v_add_f32 v28, v28, v36')
a('v_add_f32 v28, v28, v32')
a('v_cvt_pk_bf16_f32 v28, v28, v28')
a('v_ashrrev_i32 v29, 31, v28')
a('v_or_b32 v29, 0x80000000, v29')
a('v_xor_b32 v28, v28, v29')
a('v_and_b32 v28, 0xffff0000, v28')
a('v_or_b32 v28, v28, v37')
a(f'v_mov_b32_dpp v29, v28 row_shl:1 {DPPM}')
a(f'v_mov_b32_dpp v30, v28 row_shl:2 {DPPM}')
a(f'v_mov_b32_dpp v31, v28 row_shl:3 {DPPM}')
a('s_mov_b64 exec, 0x1111')
a('buffer_store_dwordx4 v[28:31], v38, s[40:43], s65 offen sc1')
a('s_mov_b64 exec, -1')
a('L_OUT:')
for i in range(8):
    a(f'v_add_f32 v36, v{E+2*i}, v{H+2*i}')
    a(f'v_add_f32 v37, v{E+2*i+1}, v{H+2*i+1}')
    a(f'v_cvt_pk_bf16_f32 v{20+i}, v36, v37')
    a(f'v_min_u32 v{12+i}, -2, v{12+i}')
a('s_branch TOP8')
a('L_IDLE:')
for _ in range(3):
    a('s_barrier')
a('s_branch TOP8')
a('FFN0:')
WB = 56
a('s_mul_i32 s54, s53, 18432')
a(f's_add_u32 s54, s54, {WS_PART}')
a('s_movk_i32 s55, 12288')
a('v_and_b32 v5, 15, v0')
a('v_bfe_u32 v6, v0, 4, 2')
a('s_waitcnt lgkmcnt(0)')
a(f's_load_dword s39, s[36:37], {WS_EPOCH}')
a('s_mov_b32 s40, s36'); a('s_mov_b32 s41, s37')
srd_ws(72, 54, 18432)
a(f'buffer_store_dwordx4 v[{PZ}:{PZ+3}], v3, s[72:75], 0 offen sc1')
a(f'buffer_store_dwordx4 v[{PZ}:{PZ+3}], v3, s[72:75], s55 offen sc1')
a('s_lshl_b32 s68, s53, 2')
a(f's_add_u32 s68, s68, {WS_PF}')
a('s_waitcnt vmcnt(0) lgkmcnt(0)')
a('s_add_u32 s39, s39, 1')
a('s_barrier')
stamp(1)
a('s_cmp_ge_u32 s38, 9')
a('s_cbranch_scc1 N_WD')
a('s_mul_i32 s64, s38, 43')
a('s_lshr_b32 s64, s64, 7')
a('s_mul_i32 s65, s64, 3')
a('s_sub_u32 s65, s38, s65')
a('s_mul_i32 s66, s53, 192')
a('s_lshl_b32 s67, s64, 6')
a('s_add_u32 s66, s66, s67')
a(f's_mul_i32 s67, s65, {192*9216}')
a('s_add_u32 s66, s66, s67')
a('v_and_b32 v7, 7, v5')
a(f's_mov_b32 s67, {8*9216}')
a('v_mul_lo_u32 v8, v6, s67')
a('v_lshl_add_u32 v8, v7, 3, v8')
a('v_add_u32 v8, s66, v8')
a('v_cmp_gt_u32 vcc, 8, v5')
a('v_mov_b32 v10, s28')
a('v_mov_b32 v11, s26')
a('v_cndmask_b32 v10, v10, v11, vcc')
a('v_mov_b32 v11, s29')
a('v_mov_b32 v12, s27')
a('v_cndmask_b32 v11, v11, v12, vcc')
a('v_add_co_u32 v10, vcc, v10, v8')
a('v_addc_co_u32 v11, vcc, 0, v11, vcc')
a('s_movk_i32 s66, 9216')
a(f's_mov_b32 s67, {25*9216}')
for ks in range(6):
    for e in range(8):
        r = WB + 16 * (ks + 1) + 2 * e
        a(f'global_load_dwordx2 v[{r}:{r+1}], v[10:11], off{NT}')
        if not (ks == 5 and e == 7):
            a(f'v_add_co_u32 v10, vcc, {"s66" if e < 7 else "s67"}, v10')
            a('v_addc_co_u32 v11, vcc, 0, v11, vcc')
a('s_mov_b32 s66, 0x05040100')
a('s_mov_b32 s67, 0x07060302')
for ks in range(6):
    a(f's_waitcnt vmcnt({8*(5-ks)})')
    S = WB + 16 * (ks + 1); T = WB + 16 * ks
    for p in range(4):
        for j in range(2):
            lo_, hi_ = S + 4 * p + j, S + 4 * p + 2 + j
            a(f'v_perm_b32 v{T+8*j+p}, v{hi_}, v{lo_}, s66')
            a(f'v_perm_b32 v{T+8*j+4+p}, v{hi_}, v{lo_}, s67')
a('s_branch N_CHECK')
a('N_WD:')
a('s_cmp_lg_u32 s38, 9')
a('s_cbranch_scc1 N_NOPF')
a('v_mov_b32 v8, s39')
a('v_mov_b32 v9, 0')
a('s_mov_b64 exec, 1')
a('buffer_store_dword v8, v9, s[40:43], s68 offen sc1')
a('s_mov_b64 exec, -1')
a('N_NOPF:')
a('v_lshrrev_b32 v7, 3, v1')
a('v_bfe_u32 v10, v1, 1, 2')
a('v_xor_b32 v10, v10, v6')
a('v_and_b32 v11, 1, v1')
a('v_lshl_add_u32 v10, v10, 1, v11')
a('s_movk_i32 s66, 1152')
a('v_mul_lo_u32 v7, v7, s66')
a('v_lshl_add_u32 v7, v10, 4, v7')
a('s_mov_b32 s44, s30'); a('s_mov_b32 s45, s31'); a(f's_mov_b32 s46, {D*F*2}'); a('s_mov_b32 s47, 0x00020000')
a('s_sub_u32 s64, s38, 9')
a(f's_mul_i32 s65, s53, {96*1152}')
a('s_mul_i32 s66, s64, 384')
a('s_add_u32 s65, s65, s66')
a(f's_mul_i32 s66, s64, {3*96*128}')
for cb in range(3):
    for g in range(12):
        a(f's_add_u32 m0, s66, {cb*96*128 + g*1024}')
        a(f's_add_u32 s67, s65, {cb*128 + g*8*1152}')
        a(f'buffer_load_dwordx4 v7, s[44:47], s67 offen{NT} lds')
a('N_CHECK:')
stamp(2)
a('s_cmp_ge_u32 s38, 4')
a('s_cbranch_scc1 TOP8')
a('v_lshlrev_b32 v9, 6, v0')
a(f's_movk_i32 s64, {WS_STATS+4}')
tag_poll('N_STP', 9, 's64', 10)
a('s_lshl_b32 s64, s53, 2')
a('s_add_u32 s64, s64, s38')
a('s_mul_i32 s64, s64, 11520')
a(f's_add_u32 s64, s64, {WS_Z}')
a('v_mov_b32 v9, 0')
a('s_mov_b64 exec, 1')
def zh_ld():
    a('buffer_load_dword v10, v9, s[40:43], s64 offen sc1')
def zh_ck():
    a('v_cmp_eq_u32 vcc, -1, v10')
poll_loop('N_ZH', zh_ld, zh_ck)
a('s_mov_b64 exec, -1')
stamp(4)
a('TOP8:')
stamp(9)
SORT8 = [(0,1),(2,3),(4,5),(6,7),(0,2),(1,3),(4,6),(5,7),(1,2),(5,6),(0,4),(3,7),(1,5),(2,6),(1,4),(3,6),(2,4),(3,5),(3,4)]
def ce(regs, i, j, tmp):
    x, y = regs[i], regs[j]
    t = tmp[0]
    a(f'v_max_u32 v{t}, v{x}, v{y}')
    a(f'v_min_u32 v{y}, v{x}, v{y}')
    regs[i] = t
    tmp[0] = x
def merge_level(regs, alt, dpp, tmp, final=False):
    for i in range(8):
        a(f'v_max_u32_dpp v{alt[i]}, v{regs[7-i]}, v{regs[i]} {dpp} {DPPM}')
    for i in range(8):
        regs[i], alt[i] = alt[i], regs[i]
    if final: return
    for st in (4, 2, 1):
        for i in range(8):
            if i & st == 0:
                ce(regs, i, i + st, tmp)
LV = ['quad_perm:[1,0,3,2]', 'quad_perm:[2,3,0,1]', 'row_half_mirror', 'row_mirror']
K0 = 28
a('v_and_b32 v10, 15, v1')
a('v_lshlrev_b32 v10, 5, v10')
a(f'v_add_u32 v10, {M_TOP}, v10')
a('s_cmp_ge_u32 s38, 4')
a('s_cbranch_scc1 T_S2')
a('v_lshlrev_b32 v9, 5, v0')
a(f's_mov_b32 s65, {WS_KEYS}')
a('v_lshrrev_b32 v11, 4, v0')
a('v_lshlrev_b32 v11, 5, v11')
a(f'v_add_u32 v11, {M_TOP}, v11')
def k_loads():
    a(f'buffer_load_dwordx4 v[{K0}:{K0+3}], v9, s[40:43], s65 offen sc1')
    a(f'buffer_load_dwordx4 v[{K0+4}:{K0+7}], v9, s[40:43], s65 offen offset:16 sc1')
a('s_cmp_ge_u32 s2, 192')
a('s_cselect_b64 exec, -1, 1')
poll2('T_KP', k_loads, chk8(K0, 45, 46), skip='s_cmp_lt_u32 s2, 192')
stamp(10)
regs = list(range(K0, K0 + 8)); alt = list(range(K0 + 8, K0 + 16)); tmp = [K0 + 16]
for i, j in SORT8:
    ce(regs, i, j, tmp)
for dpp in LV:
    merge_level(regs, alt, dpp, tmp)
for i in range(8):
    a(f'v_mov_b32 v{48+i}, v{regs[i]}')
a('s_mov_b32 exec_lo, 0x00010001')
a('s_mov_b32 exec_hi, 0x00010001')
a('ds_write_b128 v11, v[48:51]')
a('ds_write_b128 v11, v[52:55] offset:16')
a('s_mov_b64 exec, -1')
a('s_waitcnt lgkmcnt(0)')
a('T_S2:')
a('s_barrier')
a(f'ds_read_b128 v[{K0}:{K0+3}], v10')
a(f'ds_read_b128 v[{K0+4}:{K0+7}], v10 offset:16')
a('s_waitcnt lgkmcnt(0)')
regs = list(range(K0, K0 + 8)); alt = list(range(K0 + 8, K0 + 16)); tmp = [K0 + 16]
for n, dpp in enumerate(LV):
    merge_level(regs, alt, dpp, tmp, final=(n == 3))
for i in range(8):
    a(f'v_readfirstlane_b32 s{44+i}, v{regs[i]}')
stamp(11)
a('s_cmp_ge_u32 s2, 192')
a('s_cbranch_scc1 FFN1')
a('s_cmp_ge_u32 s2, 144')
a('s_cbranch_scc1 END')
a('s_cmp_ge_u32 s2, 128')
a('s_cbranch_scc1 FINAL')
a('s_cmp_ge_u32 s38, 9')
a('s_cbranch_scc1 END')
a('v_sub_u32 v9, 0x7ff, v4')
a('v_mov_b32 v10, -1')
for i in range(8):
    a(f's_and_b32 s64, s{44+i}, 0x7ff')
    a('v_cmp_eq_u32 vcc, s64, v9')
    a(f'v_cndmask_b32 v10, v10, {i}, vcc')
a('s_mov_b32 s72, s32'); a('s_mov_b32 s73, s33'); a(f's_mov_b32 s74, {XBYTES}'); a('s_mov_b32 s75, 0x00020000')
a('s_movk_i32 s64, 1152')
a('v_mul_lo_u32 v11, v10, s64')
a('v_add_u32 v11, v11, v8')
a(f's_mov_b32 s65, {WS_H}')
OSC = ' sc1' if OPT['outsc'] else ''
a('v_cmp_le_i32 vcc, 0, v10')
a('s_and_saveexec_b64 s[70:71], vcc')
a('s_cbranch_execz O_NOSEL')
a('buffer_store_dwordx4 v[12:15], v11, s[40:43], s65 offen sc1')
a('buffer_store_dwordx4 v[16:19], v11, s[40:43], s65 offen offset:16 sc1')
a('O_NOSEL:')
a('s_xor_b64 exec, exec, s[70:71]')
a(f'buffer_store_dwordx4 v[20:23], v7, s[72:75], 0 offen{OSC}')
a(f'buffer_store_dwordx4 v[24:27], v7, s[72:75], 0 offen offset:16{OSC}')
a('s_mov_b64 exec, -1')
a('s_branch FINAL')
a('FFN1:')
a('v_and_b32 v5, 15, v1')
a('v_lshrrev_b32 v6, 4, v1')
a('s_cmp_ge_u32 s38, 9')
a('s_cbranch_scc1 F_WAITD')
a('v_mov_b32 v7, s44')
for i in range(1, 8):
    m = 0x01010101 << i
    a(f's_mov_b32 s66, 0x{m:08x}')
    a(f's_mov_b32 s67, 0x{m:08x}')
    a(f'v_mov_b32 v8, s{44+i}')
    a(f'v_cndmask_b32 v7, v7, v8, s[66:67]')
a('v_and_b32 v7, 0x7ff, v7')
a('v_sub_u32 v7, 0x7ff, v7')
a('s_movk_i32 s64, 1152')
a('v_mul_lo_u32 v7, v7, s64')
a('v_lshl_add_u32 v7, v6, 4, v7')
a('s_mul_i32 s64, s38, 43')
a('s_lshr_b32 s64, s64, 7')
a('s_mul_i32 s65, s64, 3')
a('s_sub_u32 s65, s38, s65')
a('s_mul_i32 s65, s65, 384')
a(f's_add_u32 s65, s65, {WS_Z}')
ZF = 8
def z_loads():
    for ks in range(6):
        a(f'buffer_load_dwordx4 v[{ZF+4*ks}:{ZF+4*ks+3}], v7, s[40:43], s65 offen offset:{64*ks} sc1')
def z_check():
    a(f'v_max3_u32 v48, v{ZF}, v{ZF+1}, v{ZF+2}')
    a(f'v_max3_u32 v49, v{ZF+3}, v{ZF+4}, v{ZF+5}')
    for r in range(6, 24, 6):
        a(f'v_max3_u32 v48, v48, v{ZF+r}, v{ZF+r+1}')
        a(f'v_max3_u32 v49, v49, v{ZF+r+2}, v{ZF+r+3}')
        a(f'v_max3_u32 v48, v48, v{ZF+r+4}, v{ZF+r+5}')
    a('v_max_u32 v48, v48, v49')
    a('v_cmp_eq_u32 vcc, -1, v48')
poll_loop('F_ZP', z_loads, z_check)
a('s_mov_b64 exec, -1')
GA_ = 32
for ks in range(6):
    for c in range(4):
        W = WB + 16 * ks + 4 * c
        src = f'v[{GA_+4*c}:{GA_+4*c+3}]' if ks else '0'
        a(f'v_mfma_f32_16x16x32_bf16 v[{GA_+4*c}:{GA_+4*c+3}], v[{W}:{W+3}], v[{ZF+4*ks}:{ZF+4*ks+3}], {src}')
a('s_lshl_b32 s66, s38, 11')
a(f's_add_u32 s66, s66, {GP0}')
a('v_lshlrev_b32 v7, 7, v6')
a('v_lshl_add_u32 v7, v5, 4, v7')
a('v_add_u32 v7, s66, v7')
a('s_mov_b32 exec_lo, 0x00ff00ff')
a('s_mov_b32 exec_hi, 0x00ff00ff')
for c in range(4):
    a(f'ds_write_b128 v7, v[{GA_+4*c}:{GA_+4*c+3}] offset:{512*c}')
a('s_mov_b64 exec, -1')
a('F_WAITD:')
a('s_lshr_b32 s64, s38, 2')
a('s_and_b32 s65, s38, 3')
a(f's_mul_i32 s66, s64, {3*2048}')
a('s_lshl_b32 s67, s65, 9')
a('s_add_u32 s66, s66, s67')
a(f's_add_u32 s66, s66, {GP0}')
a('v_and_b32 v8, 7, v1')
a('v_bfe_u32 v9, v1, 3, 2')
a('v_lshrrev_b32 v10, 5, v1')
a('v_lshlrev_b32 v11, 4, v8')
a('v_lshl_add_u32 v11, v9, 2, v11')
a('v_lshl_add_u32 v11, v10, 7, v11')
a('v_add_u32 v11, s66, v11')
a(f'v_mul_u32_u24 v12, {HIDS}, v8')
a('v_lshl_add_u32 v12, v10, 5, v12')
a('v_lshl_add_u32 v12, v9, 3, v12')
a('s_lshl_b32 s66, s64, 6')
a('s_lshl_b32 s67, s65, 1')
a('s_add_u32 s66, s66, s67')
a(f's_add_u32 s66, s66, {HID}')
a('v_add_u32 v12, s66, v12')
a('s_waitcnt vmcnt(0) lgkmcnt(0)')
a('s_barrier')
for kt in range(3):
    a(f'ds_read_b32 v{16+kt}, v11 offset:{kt*2048}')
    a(f'ds_read_b32 v{20+kt}, v11 offset:{kt*2048+256}')
a('v_lshrrev_b32 v13, 2, v5')
a('v_lshl_add_u32 v13, v6, 2, v13')
a('v_bfe_u32 v14, v13, 1, 2')
a('v_lshlrev_b32 v13, 7, v13')
a('v_and_b32 v15, 3, v5')
a('v_lshl_add_u32 v13, v15, 3, v13')
a(f's_mul_i32 s66, s38, {96*128}')
a('v_add_u32 v13, s66, v13')
for t in range(4):
    a(f'v_xor_b32 v15, {t}, v14')
    a(f'v_lshl_add_u32 v{24+t}, v15, 5, v13')
a('v_and_b32 v28, 7, v5')
a(f'v_mul_u32_u24 v28, {HIDS}, v28')
a('v_lshl_add_u32 v28, v6, 3, v28')
a(f'v_add_u32 v28, {HID}, v28')
a('s_waitcnt lgkmcnt(0)')
a('v_add_f32 v16, v16, v17'); a('v_add_f32 v20, v20, v21')
a('v_add_f32 v16, v16, v18'); a('v_add_f32 v20, v20, v22')
a('v_cvt_pk_bf16_f32 v20, v16, v20')
a('v_lshlrev_b32 v16, 16, v20')
a('v_and_b32 v20, 0xffff0000, v20')
a(f'v_mul_f32 v17, {fbits(-LOG2E)}, v16')
a('v_exp_f32 v17, v17')
a('v_add_f32 v17, 1.0, v17')
a('v_rcp_f32 v17, v17')
a('v_mul_f32 v16, v16, v17')
round_bf16_1(16)
a('v_mul_f32 v16, v16, v20')
a('v_cvt_pk_bf16_f32 v16, v16, v16')
a('ds_write_b16 v12, v16')
a('s_cmp_ge_u32 s38, 9')
a('s_cbranch_scc1 F_NOA')
AW = 56
for ks in range(3):
    for t in range(4):
        r = AW + 16 * ks + 4 * t
        a(f'ds_read_b64_tr_b16 v[{r}:{r+1}], v{24+t} offset:{ks*4096}')
        a(f'ds_read_b64_tr_b16 v[{r+2}:{r+3}], v{24+t} offset:{ks*4096+2048}')
a('F_NOA:')
a('s_waitcnt lgkmcnt(0)')
a('s_barrier')
a('s_cmp_ge_u32 s38, 9')
a('s_cbranch_scc1 END')
for ks in range(3):
    a(f'ds_read_b64 v[{8+4*ks}:{9+4*ks}], v28 offset:{64*ks}')
    a(f'ds_read_b64 v[{10+4*ks}:{11+4*ks}], v28 offset:{64*ks+32}')
a('v_and_b32 v20, 7, v5')
a('s_movk_i32 s66, 2304')
a('v_mul_lo_u32 v20, v20, s66')
a('v_lshrrev_b32 v21, 3, v5')
a('v_lshl_add_u32 v20, v21, 6, v20')
a('v_lshl_add_u32 v20, v6, 4, v20')
a('s_mul_i32 s66, s53, 18432')
a('s_lshl_b32 s67, s38, 8')
a('s_add_u32 s66, s66, s67')
a(f's_add_u32 s66, s66, {WS_PART}')
for ks in range(3):
    a(f's_waitcnt lgkmcnt({4-2*ks})')
    for t in range(4):
        r = AW + 16 * ks + 4 * t
        src = f'v[{32+4*t}:{35+4*t}]' if ks else '0'
        a(f'v_mfma_f32_16x16x32_bf16 v[{32+4*t}:{35+4*t}], v[{r}:{r+3}], v[{8+4*ks}:{11+4*ks}], {src}')
for p in range(2):
    for r in range(4):
        a(f'v_mov_b32_dpp v{32+8*p+r}, v{36+8*p+r} row_shr:8 {DPPM}')
    for r in range(4):
        a(f'v_min_u32 v{32+8*p+r}, -2, v{32+8*p+r}')
    a(f'buffer_store_dwordx4 v[{32+8*p}:{35+8*p}], v20, s[40:43], s66 offen offset:{128*p} sc1')
a('s_branch END')
a('FINAL:')
a('s_cmp_ge_u32 s38, 7')
a('s_cbranch_scc1 END')
a('s_mul_i32 s64, s2, 3641')
a('s_lshr_b32 s64, s64, 16')
a('s_mul_i32 s65, s64, 18')
a('s_sub_u32 s65, s2, s65')
a('s_mov_b32 s66, s44')
for i in range(1, 8):
    a(f's_cmp_eq_u32 s64, {i}')
    a(f's_cselect_b32 s66, s{44+i}, s66')
a('s_and_b32 s67, s66, 0x7ff')
a('s_sub_u32 s67, 0x7ff, s67')
a('s_mul_i32 s67, s67, 1152')
a('s_lshl_b32 s68, s65, 6')
a('s_add_u32 s67, s67, s68')
a('s_cmp_eq_u32 s38, 6')
a('s_cbranch_scc1 FN_HZ')
a('v_lshrrev_b32 v4, 3, v0')
a('v_lshlrev_b32 v7, 2, v4')
a('s_movk_i32 s68, 18432')
a('v_mul_lo_u32 v4, v4, s68')
a('v_and_b32 v5, 7, v0')
a('v_lshl_add_u32 v4, v5, 4, v4')
a('s_mul_i32 s68, s64, 2304')
a('s_lshl_b32 s69, s65, 7')
a('s_add_u32 s68, s68, s69')
a(f's_add_u32 s68, s68, {WS_PART}')
a('s_lshl_b32 s69, s38, 7')
a(f's_add_u32 s69, s69, {M_FIN}')
a('v_lshl_add_u32 v6, v5, 4, s69')
a(f's_movk_i32 s69, {WS_PF}')
tag_poll('FN_PF', 7, 's69', 20)
def p_loads():
    a('buffer_load_dwordx4 v[20:23], v4, s[40:43], s68 offen sc1')
a('s_mov_b64 exec, 1')
poll2('FN_PP', p_loads, chk4(20))
reduce_q8([20, 21, 22, 23], [24, 25, 26, 27])
a('s_mov_b64 exec, 0xff')
a('ds_write_b128 v6, v[20:23]')
a('s_mov_b64 exec, -1')
a('s_branch FN_B')
a('FN_HZ:')
a(f's_add_u32 s68, s67, {WS_Z}')
a('s_mul_i32 s69, s64, 1152')
a('s_lshl_b32 s65, s65, 6')
a('s_add_u32 s69, s69, s65')
a(f's_add_u32 s69, s69, {WS_H - 64}')
a('v_mov_b32 v4, s68')
a('v_mov_b32 v5, s69')
a('v_cmp_gt_u32 vcc, 4, v1')
a('v_cndmask_b32 v4, v5, v4, vcc')
a('v_lshl_add_u32 v4, v1, 4, v4')
a('v_lshlrev_b32 v6, 4, v1')
a(f'v_add_u32 v6, {M_FIN+768}, v6')
a('s_mov_b64 exec, 0xff')
def hz_loads():
    a('buffer_load_dwordx4 v[20:23], v4, s[40:43], 0 offen sc1')
poll_loop('FN_HP', hz_loads, chk4(20))
a('s_mov_b64 exec, 0xff')
a('ds_write_b128 v6, v[20:23]')
a('s_mov_b64 exec, -1')
a('FN_B:')
a('s_waitcnt lgkmcnt(0)')
a('s_barrier')
a('s_cmp_lg_u32 s38, 0')
a('s_cbranch_scc1 END')
a('v_and_b32 v4, 31, v1')
a('v_lshlrev_b32 v5, 2, v4')
a(f'v_add_u32 v5, {M_FIN}, v5')
a('v_lshlrev_b32 v6, 1, v4')
a(f'v_add_u32 v7, {M_FIN+768}, v6')
for w in range(6):
    a(f'ds_read_b32 v{8+w}, v5 offset:{128*w}')
a('ds_read_u16 v14, v7')
a('ds_read_u16 v15, v7 offset:64')
a('s_and_b32 s66, s66, 0xffff0000')
a('s_ashr_i32 s68, s66, 31')
a('s_not_b32 s68, s68')
a('s_or_b32 s68, s68, 0x80000000')
a('s_xor_b32 s66, s66, s68')
a('s_and_b32 s66, s66, 0xffff0000')
a('v_mov_b32 v16, s66')
a(f'v_mul_f32 v16, {fbits(-LOG2E)}, v16')
a('v_exp_f32 v16, v16')
a('v_add_f32 v16, 1.0, v16')
a('v_rcp_f32 v16, v16')
round_bf16_1(16)
a('s_mov_b32 s72, s32'); a('s_mov_b32 s73, s33'); a(f's_mov_b32 s74, {XBYTES}'); a('s_mov_b32 s75, 0x00020000')
a('s_waitcnt lgkmcnt(0)')
a('v_add_f32 v8, v8, v9'); a('v_add_f32 v10, v10, v11'); a('v_add_f32 v12, v12, v13')
a('v_add_f32 v8, v8, v10'); a('v_add_f32 v8, v8, v12')
round_bf16_1(8)
a('v_mul_f32 v8, v8, v16')
round_bf16_1(8)
a('v_lshlrev_b32 v14, 16, v14')
a('v_lshlrev_b32 v15, 16, v15')
a('v_add_f32 v8, v8, v14')
round_bf16_1(8)
a('v_add_f32 v8, v8, v15')
a('v_cvt_pk_bf16_f32 v8, v8, v8')
a('s_mov_b32 exec_hi, 0')
a('buffer_store_short v8, v6, s[72:75], s67 offen')
a('s_cmp_lg_u32 s2, 0')
a('s_cbranch_scc1 FN_NOEP')
a('v_mov_b32 v20, s39')
a(f'v_mov_b32 v21, {WS_EPOCH}')
a('s_mov_b64 exec, 1')
a('buffer_store_dword v20, v21, s[40:43], 0 offen sc1')
a('FN_NOEP:')
a('s_mov_b64 exec, -1')
a('END:')
if PROF:
    a(f's_cmp_ge_u32 s2, {NWG}')
    a('s_cbranch_scc1 END2')
    a('s_memrealtime s[100:101]')
    a('s_memtime s[70:71]')
    a(f's_add_u32 s72, s36, {WS_PROF}')
    a('s_addc_u32 s73, s37, 0')
    a(f's_mov_b32 s74, {1<<20}')
    a('s_mov_b32 s75, 0x00020000')
    a('s_mul_i32 s64, s2, 12')
    a('s_add_u32 s64, s64, s38')
    a('s_lshl_b32 s64, s64, 6')
    a('v_mov_b32 v2, s64')
    a('s_mov_b64 exec, 1')
    a('s_waitcnt lgkmcnt(0)')
    for i in range(13):
        a(f'v_mov_b32 v3, s{76+2*i}')
        a(f'buffer_store_dword v3, v2, s[72:75], 0 offen offset:{4*i}')
    a('v_mov_b32 v3, s70')
    a('buffer_store_dword v3, v2, s[72:75], 0 offen offset:56')
    a('buffer_store_dword v163, v2, s[72:75], 0 offen offset:52')
    a('v_mov_b32 v3, s3')
    a('buffer_store_dword v3, v2, s[72:75], 0 offen offset:60')
    a('END2:')
a('s_endpgm')
a.check_branches()

ref = open(f'/code/{NAME}.s.ref').read().split('\n')
head = [l for l in ref if l.startswith(';') and '@launch' not in l and 'Override launch' not in l and 'grid=ceil' not in l]
txt = '\n'.join(head) + f'\n; @launch grid=({NWG},1,1) block=(768,1,1) lds={LDS_BYTES}\n'
txt += '.amdgcn_target "amdgcn-amd-amdhsa--gfx950"\n' + a.text()
txt += f'''.section .rodata,"a"
.p2align 6
.amdhsa_kernel {KN}
  .amdhsa_next_free_vgpr 168
  .amdhsa_next_free_sgpr 102
  .amdhsa_accum_offset 168
  .amdhsa_group_segment_fixed_size 0
  .amdhsa_kernarg_size 136
  .amdhsa_user_sgpr_count 2
  .amdhsa_user_sgpr_kernarg_segment_ptr 1
  .amdhsa_system_sgpr_workgroup_id_x 1
.end_amdhsa_kernel
'''
args = [x for x in sys.argv[1:] if not x.startswith('--') and '=' not in x]
path = args[0] if args else f'/code/{NAME}.s'
open(path, 'w').write(txt)
print('wrote', path, len(txt))
```

```python
import sys, struct
from asmlib import Asm

NAME = 'sequential_preLN__ssm_conv_s4__moe_arch_mod__prompt'
L, D, N, F = 2048, 576, 128, 4608
XBYTES = L * D * 2
NWG = 240
PROF = '--prof' in sys.argv
OPT = dict(spin=4000, pre_sleep=2, nt=0, outsc=0, colpos=3, colmod=2, noffn=0, stset=0, epsc=1)
for arg in sys.argv[1:]:
    if '=' in arg:
        k, v = arg.split('=')
        OPT[k] = int(v)
NT = ' nt' if OPT['nt'] else ''

WS_EPOCH = 0
WS_YF = 1024
WS_PF = 2048
WS_STATS = 4096
WS_KEYS = 32768
WS_H = 49152
WS_YY = 65536
WS_Z = WS_YY + XBYTES
WS_PART = WS_Z + XBYTES
WS_PROF = 64 << 20

RS = 544
KV0 = 3 * 64 * RS
KVS = 3072
U0 = KV0 + 3 * KVS
US = 4608
KHS = 4160
RED = 3 * 4 * KHS
STG = RED + 12 * 2048
YT = 0
GP0 = 110592
HID = GP0 + 9 * 4 * 512
HIDS = 208
MISC = 131072
M_CNT = MISC
M_ZERO = MISC + 16
M_GRAN = MISC + 128
M_EX = MISC + 256
M_EX2 = MISC + 1536
M_TOP = MISC + 2304
M_FIN = MISC + 2816
LDS_BYTES = MISC + 4096

LOG2E = 1.4426950408889634
INV2PI = 0.15915494309189535
DPPM = 'row_mask:0xf bank_mask:0xf'

def fbits(x):
    return '0x%08x' % struct.unpack('<I', struct.pack('<f', x))[0]

def split2(x):
    hi = struct.unpack('<f', struct.pack('<f', x))[0]
    return hi, x - hi

a = Asm()
_st = [0]
def xstamp(setno, i):
    if PROF and OPT['stset'] == setno:
        a(f's_memrealtime s[{76+2*i}:{77+2*i}]')
        a('s_waitcnt lgkmcnt(0)')
def stamp(i):
    if PROF and OPT['stset'] == 0:
        a(f's_memrealtime s[{76+2*i}:{77+2*i}]')
        a('s_waitcnt lgkmcnt(0)')

def sleep(n):
    while n > 0:
        a(f's_sleep {min(n, 127)}'); n -= 127

def srd_ws(s, off_sgpr, size):
    a(f's_add_u32 s{s}, s36, s{off_sgpr}')
    a(f's_addc_u32 s{s+1}, s37, 0')
    a(f's_mov_b32 s{s+2}, {size}')
    a(f's_mov_b32 s{s+3}, 0x00020000')

def allreduce64_add(vs, ts):
    for dpp in ('quad_perm:[1,0,3,2]', 'quad_perm:[2,3,0,1]', 'row_half_mirror', 'row_mirror'):
        for v in vs:
            a(f'v_add_f32_dpp v{v}, v{v}, v{v} {dpp} {DPPM}')
    for sw in ('v_permlane16_swap_b32', 'v_permlane32_swap_b32'):
        for v, t in zip(vs, ts):
            a(f'v_mov_b32 v{t}, v{v}')
        for v, t in zip(vs, ts):
            a(f'{sw} v{v}, v{t}')
        for v, t in zip(vs, ts):
            a(f'v_add_f32 v{v}, v{v}, v{t}')

def reduce_q8(vs, ts):
    for v in vs:
        a(f'v_add_f32_dpp v{v}, v{v}, v{v} row_ror:8 {DPPM}')
    for sw in ('v_permlane16_swap_b32', 'v_permlane32_swap_b32'):
        for v, t in zip(vs, ts):
            a(f'v_mov_b32 v{t}, v{v}')
        for v, t in zip(vs, ts):
            a(f'{sw} v{v}, v{t}')
        for v, t in zip(vs, ts):
            a(f'v_add_f32 v{v}, v{v}, v{t}')

def round_bf16_1(v):
    a(f'v_cvt_pk_bf16_f32 v{v}, v{v}, v{v}')
    a(f'v_lshlrev_b32 v{v}, 16, v{v}')

def sd_from_var(v):
    round_bf16_1(v)
    a(f'v_add_f32 v{v}, {fbits(1e-5)}, v{v}')
    round_bf16_1(v)
    a(f'v_sqrt_f32 v{v}, v{v}')
    round_bf16_1(v)

def cexp(dre, dim, lr2, li, p, t0, t1, t2):
    a(f's_mov_b32 s61, {fbits(float(p))}')
    a(f'v_mul_f32 v{t0}, s61, v{lr2}')
    a(f'v_exp_f32 v{t0}, v{t0}')
    a(f'v_mul_f32 v{t1}, s61, v{li}')
    a(f'v_mul_f32 v{t2}, s62, v{t1}')
    a(f'v_fma_f32 v{dre}, v{t1}, s62, -v{t2}')
    a(f'v_fmac_f32 v{dre}, s63, v{t1}')
    a(f'v_fract_f32 v{t2}, v{t2}')
    a(f'v_add_f32 v{t2}, v{t2}, v{dre}')
    a(f'v_cos_f32 v{dre}, v{t2}')
    a(f'v_sin_f32 v{dim}, v{t2}')
    a(f'v_mul_f32 v{dre}, v{dre}, v{t0}')
    a(f'v_mul_f32 v{dim}, v{dim}, v{t0}')

def cmul(dr, di, ar, ai, br, bi):
    a(f'v_mul_f32 v{dr}, v{ar}, v{br}')
    a(f'v_mul_f32 v{di}, v{ar}, v{bi}')
    a(f'v_fma_f32 v{dr}, -v{ai}, v{bi}, v{dr}')
    a(f'v_fmac_f32 v{di}, v{ai}, v{br}')

def put(row, re, im, tmp, addr, neg=False):
    a(f'v_cvt_pk_bf16_f32 v{tmp}, v{re}, {"-" if neg else ""}v{im}')
    a(f'ds_write_b32 v{addr}, v{tmp} offset:{row*RS}')

def poll_loop(label, loads, check, spin_s='s60'):
    a(f's_movk_i32 {spin_s}, {OPT["spin"]}')
    a(f'{label}:')
    loads()
    a('s_waitcnt vmcnt(0)')
    check()
    a('s_and_b64 exec, exec, vcc')
    a(f's_cbranch_execz {label}_D')
    a(f's_sub_u32 {spin_s}, {spin_s}, 1')
    a(f's_cmp_gt_i32 {spin_s}, 0')
    a('s_sleep 1')
    a(f's_cbranch_scc1 {label}')
    a(f'{label}_D:')

def allreduce32_add(vs, ts):
    for dpp in ('quad_perm:[1,0,3,2]', 'quad_perm:[2,3,0,1]', 'row_half_mirror', 'row_mirror'):
        for v in vs:
            a(f'v_add_f32_dpp v{v}, v{v}, v{v} {dpp} {DPPM}')
    for v, t in zip(vs, ts):
        a(f'v_mov_b32 v{t}, v{v}')
    for v, t in zip(vs, ts):
        a(f'v_permlane16_swap_b32 v{v}, v{t}')
    for v, t in zip(vs, ts):
        a(f'v_add_f32 v{v}, v{v}, v{t}')

def reduce_g(vs, ts):
    for sw in ('v_permlane16_swap_b32', 'v_permlane32_swap_b32'):
        for v, t in zip(vs, ts):
            a(f'v_mov_b32 v{t}, v{v}')
        for v, t in zip(vs, ts):
            a(f'{sw} v{v}, v{t}')
        for v, t in zip(vs, ts):
            a(f'v_add_f32 v{v}, v{v}, v{t}')

def poll2(label, loads, check, full='-1', skip=None):
    a(f's_movk_i32 s60, {OPT["spin"]}')
    if skip:
        a(skip)
        a('s_cselect_b32 s61, 0, 1')
    else:
        a('s_mov_b32 s61, 0')
    a(f'{label}:')
    loads()
    a('s_waitcnt vmcnt(0)')
    check()
    a('s_and_b64 exec, exec, vcc')
    a(f's_cbranch_execz {label}_D')
    a('s_sub_u32 s60, s60, 1')
    a('s_cmp_gt_i32 s60, 0')
    a(f's_sleep {OPT["pre_sleep"]}')
    a(f's_cbranch_scc1 {label}')
    a(f'{label}_D:')
    a(f's_mov_b64 exec, {full}')
    a('s_xor_b32 s61, s61, 1')
    a(f's_cbranch_scc1 {label}')

def tag_poll(label, vaddr, soff, vt):
    def ld():
        a(f'buffer_load_dword v{vt}, v{vaddr}, s[40:43], {soff} offen sc1')
    def ck():
        a(f'v_cmp_ne_u32 vcc, s39, v{vt}')
    poll_loop(label, ld, ck)
    a('s_mov_b64 exec, -1')

def chk4(r, t=28):
    def f():
        a(f'v_max_u32 v{t}, v{r}, v{r+1}')
        a(f'v_max3_u32 v{t}, v{t}, v{r+2}, v{r+3}')
        a(f'v_cmp_eq_u32 vcc, -1, v{t}')
    return f
def chk8(r, t0, t1):
    def f():
        a(f'v_max3_u32 v{t0}, v{r}, v{r+1}, v{r+2}')
        a(f'v_max3_u32 v{t1}, v{r+3}, v{r+4}, v{r+5}')
        a(f'v_max3_u32 v{t0}, v{t0}, v{r+6}, v{r+7}')
        a(f'v_max_u32 v{t0}, v{t0}, v{t1}')
        a(f'v_cmp_eq_u32 vcc, -1, v{t0}')
    return f

KN = NAME + '_kernel'
a('.text'); a(f'.globl {KN}'); a('.p2align 8'); a(f'.type {KN},@function'); a(f'{KN}:')
a(f's_cmp_ge_u32 s2, {NWG}')
a('s_cbranch_scc1 END')
a('s_load_dwordx16 s[4:19], s[0:1], 0')
a('s_load_dwordx16 s[20:35], s[0:1], 64')
a('s_load_dwordx2 s[36:37], s[0:1], 128')
if PROF:
    a('s_memrealtime s[76:77]')
    a('s_memtime s[70:71]')
    a('s_waitcnt lgkmcnt(0)')
    a('v_mov_b32 v163, s70')
    a('s_memrealtime s[70:71]')
    a('s_waitcnt lgkmcnt(0)')
    a('s_mov_b32 s3, s70')
    for i in range(78, 100):
        a(f's_mov_b32 s{i}, 0')
a('v_lshrrev_b32 v2, 6, v0')
a('v_and_b32 v1, 63, v0')
a('v_readfirstlane_b32 s38, v2')
a('v_lshlrev_b32 v3, 4, v0')
a('s_and_b32 s52, s2, 7')
a('s_mul_i32 s52, s52, 24')
a('s_lshr_b32 s53, s2, 3')
a('s_add_u32 s52, s52, s53')
a('s_and_b32 s54, s2, 7')
a('s_mul_i32 s54, s54, 6')
a('s_sub_u32 s53, s53, 24')
a('s_add_u32 s53, s53, s54')
PZ = 164
for r in range(4):
    a(f'v_mov_b32 v{PZ+r}, -1')
    a(f'v_mov_b32 v{8+r}, 0')
a('s_mov_b32 s42, 0x10000000'); a('s_mov_b32 s43, 0x00020000')
a('s_cmp_ge_u32 s2, 192')
a('s_cbranch_scc1 FFN0')
a(f'v_add_u32 v12, {MISC}, v3')
a('v_cmp_gt_u32 vcc, 4, v0')
a('s_and_saveexec_b64 s[70:71], vcc')
a('ds_write_b128 v12, v[8:11]')
a('s_mov_b64 exec, s[70:71]')
a('v_lshrrev_b32 v12, 5, v0')
a(f's_movk_i32 s54, {US}')
a('v_mul_lo_u32 v12, v12, s54')
a('v_and_b32 v13, 31, v0')
a('v_lshl_add_u32 v12, v13, 4, v12')
a(f'v_add_u32 v12, {U0+4096}, v12')
a('v_cmp_gt_u32 vcc, 0x60, v0')
a('s_and_saveexec_b64 s[70:71], vcc')
a('ds_write_b128 v12, v[8:11]')
a('s_mov_b64 exec, s[70:71]')
a('s_lshr_b32 s65, s38, 2')
a('s_mul_i32 s66, s52, 3')
a('s_add_u32 s66, s66, s65')
a('s_and_b32 s67, s38, 1')
a('s_lshl_b32 s67, s67, 6')
a('v_add_u32 v14, s67, v1')
a('s_lshl_b32 s67, s66, 8')
a('v_lshl_add_u32 v15, v14, 1, s67')
a('s_lshl_b32 s67, s66, 1')
a('v_mov_b32 v16, s67')
a('s_lshl_b32 s64, s2, 4')
a('s_lshl_b32 s67, s38, 1')
a('s_add_u32 s64, s64, s67')
a('v_lshrrev_b32 v2, 5, v1')
a('v_add_u32 v2, s64, v2')
a('s_movk_i32 s67, 1152')
a('v_mul_lo_u32 v2, v2, s67')
a('v_lshl_add_u32 v2, v13, 2, v2')
XC = 140
a('v_subrev_u32 v17, 0x100, v0')
a(f's_movk_i32 s67, {4*1152}')
a('v_mul_lo_u32 v17, v17, s67')
a('s_mul_i32 s67, s52, 6')
a('s_and_b32 s67, s67, 0xfffc')
a('v_add_u32 v17, s67, v17')
a('s_lshr_b32 s59, s2, 7')
a('s_lshr_b32 s58, s38, 3')
a('s_or_b32 s59, s59, s58')
a('s_lshl_b32 s57, s2, 6')
a(f's_add_u32 s57, s57, {WS_KEYS}')
a('s_waitcnt lgkmcnt(0)')
a(f'global_load_dword v9, v8, s[36:37] offset:{WS_EPOCH}' + (' sc1' if OPT['epsc'] else ''))
a('s_mov_b32 s40, s36'); a('s_mov_b32 s41, s37')
a('global_load_ushort v30, v16, s[18:19]')
a('global_load_ushort v31, v15, s[6:7]')
a('global_load_ushort v32, v15, s[8:9]')
a('global_load_ushort v33, v15, s[10:11]')
a('global_load_ushort v34, v15, s[12:13]')
a('global_load_ushort v35, v15, s[14:15]')
a('global_load_ushort v36, v15, s[16:17]')
a('global_load_ushort v161, v16, s[20:21]')
XR = 60
a('s_cmp_lg_u32 s59, 0')
a('s_cbranch_scc1 P_NOROW')
for i in range(9):
    a(f'global_load_dword v{XR+i}, v2, s[4:5] offset:{128*i}')
srd_ws(72, 57, 64)
a(f'buffer_store_dwordx4 v[{PZ}:{PZ+3}], v3, s[72:75], 0 offen sc1')
a('P_NOROW:')
xstamp(1, 1)
def col_loads():
    a('s_cmp_lt_u32 s38, 4')
    a('s_cbranch_scc1 P_NOCOL')
    for k in range(4):
        a(f'global_load_dwordx2 v[{XC+2*k}:{XC+2*k+1}], v17, s[4:5] offset:{1152*k}' + ['', ' nt', ' sc1', ' sc0 sc1'][OPT['colmod']])
    a('P_NOCOL:')
if OPT['colpos'] == 0: col_loads()
GA = 150
a('v_and_b32 v18, 0xff, v0')
a('v_lshlrev_b32 v18, 3, v18')
a(f's_mul_i32 s67, s65, {KVS}')
a(f's_add_u32 s67, s67, {KV0}')
a(f's_sub_u32 s68, s67, {17024*4}')
a('v_cmp_gt_u32 vcc, 0x80, v18')
for e in range(0, 12, 2):
    a(f'v_add_u32 v26, {e}, v18')
    a(f'v_add_u32 v27, {e+1}, v18')
    a('v_cvt_f32_u32 v28, v26')
    a('v_cvt_f32_u32 v29, v27')
    a('v_cvt_pk_bf16_f32 v28, v28, v29')
    a('v_lshrrev_b32 v29, 16, v28')
    a('v_and_b32 v28, 0xffff, v28')
    a('v_lshl_add_u32 v28, v28, 2, s68')
    a('v_lshl_add_u32 v29, v29, 2, s68')
    a('v_lshl_add_u32 v26, v26, 2, s67')
    a('v_lshl_add_u32 v27, v27, 2, s67')
    a(f'v_cndmask_b32 v{GA+e}, v28, v26, vcc')
    if e + 1 < 11:
        a(f'v_cndmask_b32 v{GA+e+1}, v29, v27, vcc')
xstamp(1, 2)
a('s_barrier')
xstamp(1, 3)
if PROF and OPT['stset'] == 1:
    a('s_cmp_eq_u32 s59, 0')
    a('s_cbranch_scc1 XS1')
    a('s_waitcnt vmcnt(8)')
    xstamp(1, 4)
    a('s_waitcnt vmcnt(7)')
    xstamp(1, 5)
    a('s_waitcnt vmcnt(4)')
    xstamp(1, 6)
    a('XS1:')
if OPT['colpos'] == 0:
    a('s_cmp_lt_u32 s38, 4')
    a('s_cbranch_scc1 C_W0')
    a('s_waitcnt vmcnt(4) lgkmcnt(0)')
    a('s_branch C_W1')
    a('C_W0:')
a('s_waitcnt vmcnt(0) lgkmcnt(0)')
a('C_W1:')
xstamp(1, 7)
if OPT['colpos'] == 1: col_loads()
a('v_readfirstlane_b32 s39, v9')
a('s_add_u32 s39, s39, 1')
a('s_cmp_lg_u32 s59, 0')
a('s_cbranch_scc1 C_KGEN')
X = 70
for i in range(9):
    a(f'v_lshlrev_b32 v{X+2*i}, 16, v{XR+i}')
    a(f'v_and_b32 v{X+2*i+1}, 0xffff0000, v{XR+i}')
a(f'v_add_f32 v26, v{X}, v{X+1}')
a(f'v_add_f32 v27, v{X+2}, v{X+3}')
for i in range(4, 18, 2):
    a(f'v_add_f32 v26, v26, v{X+i}')
    a(f'v_add_f32 v27, v27, v{X+i+1}')
a('v_add_f32 v26, v26, v27')
allreduce32_add([26], [27])
a(f'v_mul_f32 v26, {fbits(1.0/576)}, v26')
for i in range(0, 18, 2):
    a(f'v_sub_f32 v{X+i}, v{X+i}, v26')
    a(f'v_sub_f32 v{X+i+1}, v{X+i+1}, v26')
    if i == 0:
        a(f'v_mul_f32 v27, v{X}, v{X}')
        a(f'v_mul_f32 v28, v{X+1}, v{X+1}')
    else:
        a(f'v_fmac_f32 v27, v{X+i}, v{X+i}')
        a(f'v_fmac_f32 v28, v{X+i+1}, v{X+i+1}')
a('v_add_f32 v27, v27, v28')
allreduce32_add([27], [28])
a(f'v_mul_f32 v27, {fbits(1.0/576)}, v27')
sd_from_var(27)
a('v_cvt_pk_bf16_f32 v26, v26, v27')
a('s_lshl_b32 s67, s38, 4')
a(f's_add_u32 s67, s67, {M_GRAN}')
a('v_lshrrev_b32 v28, 5, v1')
a('v_lshl_add_u32 v28, v28, 3, s67')
a('v_mov_b32 v27, s39')
a('v_mov_b32 v29, 1')
a(f'v_mov_b32 v37, {M_CNT}')
a('s_mov_b32 exec_lo, 1')
a('s_mov_b32 exec_hi, 1')
a('ds_write_b64 v28, v[26:27]')
a('s_mov_b32 exec_hi, 0')
a('ds_add_rtn_u32 v29, v37, v29')
a('s_mov_b64 exec, -1')
a('v_lshlrev_b32 v28, 4, v1')
a(f'v_add_u32 v37, {M_GRAN}, v28')
a('s_lshl_b32 s68, s2, 7')
a(f's_add_u32 s68, s68, {WS_STATS}')
a('s_waitcnt lgkmcnt(0)')
a('v_readfirstlane_b32 s67, v29')
a('s_cmp_lg_u32 s67, 7')
a('s_cbranch_scc1 C_KGEN')
a('s_mov_b64 exec, 0xff')
a('ds_read_b128 v[40:43], v37')
a('s_waitcnt lgkmcnt(0)')
a('buffer_store_dwordx4 v[40:43], v28, s[40:43], s68 offen sc1')
a('s_mov_b64 exec, -1')
a('C_KGEN:')
stamp(1)
xstamp(1, 8)
if OPT['colpos'] == 2: col_loads()
hi, lo = split2(INV2PI)
a(f's_mov_b32 s62, {fbits(hi)}')
a(f's_mov_b32 s63, {fbits(lo)}')
a(f's_mul_i32 s67, s65, {64*RS}')
a('v_lshl_add_u32 v4, v14, 2, s67')
lh, ll = split2(LOG2E)
a('v_lshlrev_b32 v30, 16, v30')
a(f's_mov_b32 s68, {fbits(lh)}')
a(f's_mov_b32 s69, {fbits(ll)}')
a('v_mul_f32 v20, s68, v30')
a('v_fma_f32 v21, v30, s68, -v20')
a('v_fmac_f32 v21, s69, v30')
a('v_exp_f32 v20, v20')
a(f'v_mul_f32 v21, {fbits(0.6931471805599453)}, v21')
a('v_fma_f32 v20, v20, v21, v20')
round_bf16_1(20)
for r in range(6):
    a(f'v_lshlrev_b32 v{11+r if r < 3 else 8+r+6}, 16, v{31+r}' if False else f'v_lshlrev_b32 v{31+r}, 16, v{31+r}')
a('v_mul_f32 v11, v31, v20')
a('v_mul_f32 v12, v32, v20')
a('v_mul_f32 v13, v33, v20')
a('v_mul_f32 v10, v34, v20')
a('v_mul_f32 v11, s68, v11')
cmul(22, 23, 35, 36, 13, 10)
cexp(24, 25, 11, 12, 128, 30, 31, 32)
if OPT['colpos'] == 3: col_loads()
a('s_bitcmp1_b32 s38, 1')
a('s_cbranch_scc1 C_ROLE1')
cexp(26, 27, 11, 12, 8, 30, 31, 32)
cexp(28, 29, 11, 12, 1024, 30, 31, 32)
cmul(34, 35, 22, 23, 28, 29)
a('v_mov_b32 v36, 1.0')
a('v_mov_b32 v37, 0')
put(48, 36, 37, 40, 4, True)
put(49, 26, 27, 41, 4, True)
put(32, 34, 35, 42, 4)
fr, fi, gr, gi = 26, 27, 36, 37
a('v_mov_b32 v44, v26')
a('v_mov_b32 v45, v27')
ar, ai, br, bi = 34, 35, 38, 39
for j in range(2, 16):
    cmul(gr, gi, fr, fi, 44, 45)
    if j - 1 <= 8:
        cmul(br, bi, ar, ai, 24, 25)
    put(48 + j, gr, gi, 40, 4, True)
    if j - 1 <= 8:
        put(32 + j - 1, br, bi, 41, 4)
        ar, ai, br, bi = br, bi, ar, ai
    fr, fi, gr, gi = gr, gi, fr, fi
a('s_branch C_MFMA')
a('C_ROLE1:')
cexp(26, 27, 11, 12, 1, 30, 31, 32)
cexp(28, 29, 11, 12, 2, 30, 31, 32)
cexp(44, 45, 11, 12, 4, 30, 31, 32)
a('v_mov_b32 v50, v22')
a('v_mov_b32 v51, v23')
for i in range(1, 8):
    cmul(50 + 2 * i, 51 + 2 * i, 48 + 2 * i, 49 + 2 * i, 24, 25)
def row_of(i, e):
    if i < 2: return e + 8 * i
    if i < 4: return 16 + e + 4 * (i - 2)
    return 24 + e + 2 * (i - 4)
for i in range(8):
    put(row_of(i, 0), 50 + 2 * i, 51 + 2 * i, 40 + (i & 1), 4)
for i in range(4, 8):
    cmul(34, 35, 50 + 2 * i, 51 + 2 * i, 44, 45)
    put(row_of(i, 1), 34, 35, 40 + (i & 1), 4)
cur = {i: (50 + 2 * i, 51 + 2 * i) for i in range(4)}
alt = {i: (70 + 2 * i, 71 + 2 * i) for i in range(4)}
for e in range(1, 8):
    for i in range(4):
        if i >= 2 and e > 3: continue
        m = (26, 27) if i < 2 else (28, 29)
        cmul(alt[i][0], alt[i][1], cur[i][0], cur[i][1], m[0], m[1])
    for i in range(4):
        if i >= 2 and e > 3: continue
        put(row_of(i, e), alt[i][0], alt[i][1], 40 + (i & 1), 4)
        cur[i], alt[i] = alt[i], cur[i]
a('C_MFMA:')
a('v_and_b32 v5, 15, v0')
a('v_bfe_u32 v6, v0, 4, 2')
a(f's_movk_i32 s68, {RS}')
a('v_mul_lo_u32 v7, v5, s68')
a('v_lshl_add_u32 v7, v6, 4, v7')
a('v_add_u32 v7, s67, v7')
a('s_and_b32 s69, s38, 3')
a(f's_mul_i32 s68, s69, {16*RS}')
a('v_add_u32 v8, s68, v7')
a(f's_mul_i32 s67, s65, {KVS}')
a(f's_add_u32 s67, s67, {KV0}')
a('s_waitcnt lgkmcnt(0)')
a('s_barrier')
stamp(2)
a('s_cmp_ge_u32 s69, 3')
a('s_cbranch_scc1 C_EXPAND')
for kb in range(8):
    a(f'ds_read_b128 v[{16+8*kb}:{19+8*kb}], v8 offset:{kb*64}')
    a(f'ds_read_b128 v[{20+8*kb}:{23+8*kb}], v7 offset:{48*RS+kb*64}')
for r in range(4):
    a(f'v_mov_b32 v{12+r}, 0')
for kb in range(8):
    a(f's_waitcnt lgkmcnt({14-2*kb})')
    a(f'v_mfma_f32_16x16x32_bf16 v[12:15], v[{16+8*kb}:{19+8*kb}], v[{20+8*kb}:{23+8*kb}], v[12:15]')
a('s_cmp_eq_u32 s69, 1')
a('s_cbranch_scc1 C_T1')
a('s_cmp_eq_u32 s69, 2')
a('s_cbranch_scc1 C_T2')
a('v_and_b32 v9, 1, v6')
a('v_lshlrev_b32 v9, 4, v9')
a('v_lshrrev_b32 v10, 1, v6')
a('v_lshl_add_u32 v9, v10, 9, v9')
a('v_lshl_add_u32 v9, v5, 5, v9')
a('v_add_u32 v9, s67, v9')
a('s_nop 3')
a(f'ds_write_b128 v9, v[12:15]')
a('s_branch C_EXPAND')
a('C_T1:')
a('v_lshlrev_b32 v9, 8, v6')
a('v_add_u32 v9, s67, v9')
a('v_lshl_add_u32 v10, v5, 4, v9')
a('v_lshl_add_u32 v11, v5, 3, v9')
a('v_cmp_gt_u32 vcc, 2, v6')
a('v_cndmask_b32 v9, v11, v10, vcc')
a('v_mov_b32 v10, 0x80')
a('v_cndmask_b32 v10, v10, 8, vcc')
a('v_add_u32 v10, v10, v9')
a(f'ds_write_b64 v9, v[12:13] offset:1024')
a(f'ds_write_b64 v10, v[14:15] offset:1024')
a('s_branch C_EXPAND')
a('C_T2:')
a('v_lshlrev_b32 v9, 8, v6')
a('v_lshl_add_u32 v9, v5, 2, v9')
a('v_add_u32 v9, s67, v9')
a('s_nop 5')
for r in range(4):
    a(f'ds_write_b32 v9, v{12+r} offset:{2048+64*r}')
a('C_EXPAND:')
a('v_and_b32 v9, 0xff, v0')
a(f's_mul_i32 s68, s65, {4*KHS}')
a('v_lshl_add_u32 v9, v9, 4, s68')
a('v_subrev_u32 v17, 0x100, v0')
a('v_lshlrev_b32 v17, 5, v17')
a(f's_movk_i32 s64, {WS_STATS}')
a('s_waitcnt lgkmcnt(0)')
a('s_barrier')
stamp(3)
def expand(ga, addr, off):
    for e in range(11):
        a(f'ds_read_b32 v{20+e}, v{ga+e}')
    a('s_waitcnt lgkmcnt(0)')
    for k in range(4):
        a(f'v_cvt_pk_bf16_f32 v{32+k}, v{20+2*k}, v{21+2*k}')
    a(f'ds_write_b128 v{addr}, v[32:35] offset:{off}')
    for k in range(4):
        a(f'v_cvt_pk_bf16_f32 v{40+k}, v{21+2*k}, v{22+2*k}')
    a(f'ds_write_b128 v{addr}, v[40:43] offset:{off+KHS}')
    for k in range(4):
        a(f'v_cvt_pk_bf16_f32 v{36+k}, v{22+2*k}, v{23+2*k}')
    a(f'ds_write_b128 v{addr}, v[36:39] offset:{off+2*KHS}')
    for k in range(4):
        a(f'v_cvt_pk_bf16_f32 v{44+k}, v{23+2*k}, v{24+2*k}')
    a(f'ds_write_b128 v{addr}, v[44:47] offset:{off+3*KHS}')
expand(GA, 9, 32)
a('s_and_b32 s69, s38, 3')
a('s_cmp_lg_u32 s69, 0')
a('s_cbranch_scc1 C_NOFRONT')
for e in range(11):
    a(f'v_mov_b32 v{GA+e}, {M_ZERO}')
a('s_mov_b64 exec, 2')
for e in range(8, 11):
    a(f'v_mov_b32 v{GA+e}, s67')
    if e > 8:
        a(f'v_add_u32 v{GA+e}, {4*(e-8)}, v{GA+e}')
a('s_mov_b64 exec, 3')
expand(GA, 9, 0)
a('s_mov_b64 exec, -1')
a('C_NOFRONT:')
a('s_cmp_lt_u32 s38, 4')
a('s_cbranch_scc1 C_NOU')
def st_loads():
    a('buffer_load_dwordx4 v[20:23], v17, s[40:43], s64 offen sc1')
    a('buffer_load_dwordx4 v[24:27], v17, s[40:43], s64 offen offset:16 sc1')
def st_check():
    a('v_xor_b32 v28, s39, v21')
    a('v_xor_b32 v29, s39, v23')
    a('v_xor_b32 v30, s39, v25')
    a('v_xor_b32 v31, s39, v27')
    a('v_or3_b32 v28, v28, v29, v30')
    a('v_or_b32 v28, v28, v31')
    a('v_cmp_ne_u32 vcc, 0, v28')
poll_loop('C_STP', st_loads, st_check)
a('s_mov_b64 exec, -1')
stamp(4)
a('s_bitcmp1_b32 s52, 0')
a('s_cselect_b32 s68, 16, 0')
for k in range(4):
    ms = 20 + 2 * k
    a(f'v_alignbit_b32 v{32+k}, v{XC+2*k+1}, v{XC+2*k}, s68')
    a(f'v_lshrrev_b32 v{36+k}, s68, v{XC+2*k+1}')
    a(f'v_and_b32 v{ms+1}, 0xffff0000, v{ms}')
    a(f'v_lshlrev_b32 v{ms}, 16, v{ms}')
    a(f'v_rcp_f32 v{ms+1}, v{ms+1}')
for k in range(4):
    ms = 20 + 2 * k
    a(f'v_lshlrev_b32 v{40+k}, 16, v{32+k}')
    a(f'v_and_b32 v{44+k}, 0xffff0000, v{32+k}')
    a(f'v_lshlrev_b32 v{48+k}, 16, v{36+k}')
    for c in range(3):
        a(f'v_sub_f32 v{40+4*c+k}, v{40+4*c+k}, v{ms}')
for c in range(3):
    for k in range(0, 4, 2):
        r = 40 + 4 * c + k
        a(f'v_cvt_pk_bf16_f32 v{r+1}, v{r}, v{r+1}')
        a(f'v_lshlrev_b32 v{r}, 16, v{r+1}')
        a(f'v_and_b32 v{r+1}, 0xffff0000, v{r+1}')
        a(f'v_mul_f32 v{r}, v{r}, v{21+2*k}')
        a(f'v_mul_f32 v{r+1}, v{r+1}, v{23+2*k}')
a('v_lshrrev_b32 v17, 2, v17')
a(f'v_sub_u32 v17, {U0+4088}, v17')
for c in range(3):
    r = 40 + 4 * c
    a(f'v_cvt_pk_bf16_f32 v{32+2*c}, v{r+3}, v{r+2}')
    a(f'v_cvt_pk_bf16_f32 v{33+2*c}, v{r+1}, v{r}')
    a(f'ds_write_b64 v17, v[{32+2*c}:{33+2*c}] offset:{c*US}')
a('C_NOU:')
a('v_add_u32 v7, 1, v5')
a('v_and_b32 v8, 3, v7')
a('v_sub_u32 v7, v7, v8')
a('v_lshl_add_u32 v7, v6, 3, v7')
a('v_lshlrev_b32 v7, 1, v7')
a(f's_movk_i32 s68, {KHS}')
a('v_mul_lo_u32 v8, v8, s68')
a('v_add_u32 v7, v7, v8')
a('s_and_b32 s69, s38, 1')
a('s_lshl_b32 s69, s69, 8')
a(f's_mul_i32 s68, s65, {4*KHS}')
a('s_add_u32 s68, s68, s69')
a('v_add_u32 v7, s68, v7')
a('v_lshlrev_b32 v8, 5, v5')
a('v_sub_u32 v8, 480, v8')
a('v_lshl_add_u32 v8, v6, 4, v8')
a(f's_mul_i32 s64, s65, {US}')
a(f's_add_u32 s64, s64, {U0}')
a('s_add_u32 s68, s64, s69')
a('v_add_u32 v8, s68, v8')
ACC = 144
for r in range(16):
    a(f'v_mov_b32 v{ACC+r}, 0')
a('s_waitcnt lgkmcnt(0)')
a('s_barrier')
stamp(5)
a(f's_mul_i32 s54, s52, 12288')
a(f's_add_u32 s54, s54, {WS_YY}')
a(f'buffer_store_dwordx4 v[{PZ}:{PZ+3}], v3, s[40:43], s54 offen sc1')
a('s_cmp_ge_u32 s2, 128')
a('s_cbranch_scc1 C_NOZP')
a('s_mul_i32 s56, s2, 18432')
a(f's_add_u32 s56, s56, {WS_Z}')
srd_ws(72, 56, 18432)
a('s_movk_i32 s56, 12288')
a(f'buffer_store_dwordx4 v[{PZ}:{PZ+3}], v3, s[72:75], 0 offen sc1')
a(f'buffer_store_dwordx4 v[{PZ}:{PZ+3}], v3, s[72:75], s56 offen sc1')
a('s_cmp_ge_u32 s2, 8')
a('s_cbranch_scc1 C_NOZP')
a('s_mul_i32 s56, s2, 1152')
a(f's_add_u32 s56, s56, {WS_H}')
srd_ws(72, 56, 1152)
a(f'buffer_store_dwordx4 v[{PZ}:{PZ+3}], v3, s[72:75], 0 offen sc1')
a('C_NOZP:')
FA = [16, 80]; FB = [48, 112]
def conv_body(Js, nq):
    def ld(q, c, st):
        return [f'ds_read_b64 v[{FA[st]+4*q}:{FA[st]+4*q+1}], v7 offset:{512*q+64*c}',
                f'ds_read_b64 v[{FA[st]+4*q+2}:{FA[st]+4*q+3}], v7 offset:{512*q+64*c+8}',
                f'ds_read_b128 v[{FB[st]+4*q}:{FB[st]+4*q+3}], v8 offset:{512*(7-q)+64*c}']
    def mf(qa, dl, st):
        t = Js.index(qa + dl)
        return (f'v_mfma_f32_16x16x32_bf16 v[{ACC+4*t}:{ACC+4*t+3}], v[{FA[st]+4*qa}:{FA[st]+4*qa+3}], '
                f'v[{FB[st]+4*dl}:{FB[st]+4*dl+3}], v[{ACC+4*t}:{ACC+4*t+3}]')
    pairs = sorted([(qa, J - qa) for J in Js for qa in range(J + 1)], key=lambda p: (max(p), p))
    for q in range(nq):
        for x in ld(q, 0, 0): a(x)
    for c in range(4):
        st = c & 1
        nxt = [x for q in range(nq) for x in ld(q, c + 1, st ^ 1)] if c < 3 else []
        lastq = -1
        for n, (qa, dl) in enumerate(pairs):
            if c == 0 and max(qa, dl) != lastq:
                lastq = max(qa, dl)
                a(f's_waitcnt lgkmcnt({min(15, 3*(nq-1-lastq))})')
            a(mf(qa, dl, st))
            if c > 0 or lastq == nq - 1:
                for _ in range(3 if c == 0 else 2):
                    if nxt: a(nxt.pop(0))
        while nxt: a(nxt.pop(0))
        if c < 3:
            a('s_waitcnt lgkmcnt(0)')
a('s_bitcmp1_b32 s38, 1')
a('s_cbranch_scc1 C_JS1')
JSET = [[7, 6, 1, 0], [5, 4, 3, 2]]
conv_body(JSET[0], 8)
a('s_bitcmp1_b32 s38, 0')
a(f's_cselect_b32 s66, {JSET[0][2]}, {JSET[0][0]}')
a(f's_cselect_b32 s67, {JSET[0][3]}, {JSET[0][1]}')
a('s_branch C_RED')
a('C_JS1:')
conv_body(JSET[1], 6)
a('s_bitcmp1_b32 s38, 0')
a(f's_cselect_b32 s66, {JSET[1][2]}, {JSET[1][0]}')
a(f's_cselect_b32 s67, {JSET[1][3]}, {JSET[1][1]}')
a('C_RED:')
stamp(6)
a('s_lshl_b32 s68, s38, 11')
a(f's_add_u32 s68, s68, {RED}')
a('v_lshl_add_u32 v9, v1, 4, s68')
a('s_xor_b32 s68, s68, 2048') if False else None
a('s_xor_b32 s69, s38, 1')
a('s_lshl_b32 s69, s69, 11')
a(f's_add_u32 s69, s69, {RED}')
a('v_lshl_add_u32 v10, v1, 4, s69')
a('s_bitcmp1_b32 s38, 0')
a('s_cbranch_scc1 C_RH1')
a(f'ds_write_b128 v9, v[{ACC+8}:{ACC+11}]')
a(f'ds_write_b128 v9, v[{ACC+12}:{ACC+15}] offset:1024')
for r in range(8):
    a(f'v_mov_b32 v{16+r}, v{ACC+r}')
a('s_branch C_RH2')
a('C_RH1:')
a(f'ds_write_b128 v9, v[{ACC}:{ACC+3}]')
a(f'ds_write_b128 v9, v[{ACC+4}:{ACC+7}] offset:1024')
for r in range(8):
    a(f'v_mov_b32 v{16+r}, v{ACC+8+r}')
a('C_RH2:')
a('v_lshlrev_b32 v11, 5, v5')
a('v_lshl_add_u32 v11, v6, 3, v11')
a('s_add_u32 s64, s64, 4088')
a('s_lshl_b32 s68, s66, 9')
a('s_sub_u32 s68, s64, s68')
a('v_sub_u32 v12, s68, v11')
a('s_lshl_b32 s68, s67, 9')
a('s_sub_u32 s68, s64, s68')
a('v_sub_u32 v13, s68, v11')
a('v_lshrrev_b32 v14, 1, v6')
a('v_lshl_add_u32 v14, v5, 1, v14')
a('v_mul_u32_u24 v14, 48, v14')
a('v_and_b32 v15, 1, v6')
a('v_lshl_add_u32 v14, v15, 3, v14')
a('s_lshl_b32 s68, s65, 4')
a(f's_add_u32 s68, s68, {STG}')
a(f's_mul_i32 s69, s66, {32*48}')
a('s_add_u32 s69, s69, s68')
a('v_add_u32 v15, s69, v14')
a(f's_mul_i32 s69, s67, {32*48}')
a('s_add_u32 s69, s69, s68')
a('v_add_u32 v14, s69, v14')
a('v_lshlrev_b32 v161, 16, v161')
a('ds_read_b64 v[32:33], v12')
a('ds_read_b64 v[34:35], v13')
a('s_waitcnt vmcnt(0) lgkmcnt(0)')
a('s_barrier')
a('s_cmp_lg_u32 s38, 11')
a('s_cbranch_scc1 C_NOYF')
a('s_lshl_b32 s68, s52, 2')
a(f's_add_u32 s68, s68, {WS_YF}')
a('v_mov_b32 v162, s39')
a('v_mov_b32 v160, 0')
a('s_mov_b64 exec, 1')
a('buffer_store_dword v162, v160, s[40:43], s68 offen sc1')
a('s_mov_b64 exec, -1')
a('C_NOYF:')
a('ds_read_b128 v[24:27], v10')
a('ds_read_b128 v[28:31], v10 offset:1024')
for jj in range(2):
    U = 32 + 2 * jj
    T = 40 + 4 * jj
    a(f'v_and_b32 v{T}, 0xffff0000, v{U+1}')
    a(f'v_lshlrev_b32 v{T+1}, 16, v{U+1}')
    a(f'v_and_b32 v{T+2}, 0xffff0000, v{U}')
    a(f'v_lshlrev_b32 v{T+3}, 16, v{U}')
    for r in range(4):
        a(f'v_mul_f32 v{T+r}, v{T+r}, v161')
    a(f'v_cvt_pk_bf16_f32 v{T+1}, v{T}, v{T+1}')
    a(f'v_cvt_pk_bf16_f32 v{T+3}, v{T+2}, v{T+3}')
    a(f'v_lshlrev_b32 v{T}, 16, v{T+1}')
    a(f'v_and_b32 v{T+1}, 0xffff0000, v{T+1}')
    a(f'v_lshlrev_b32 v{T+2}, 16, v{T+3}')
    a(f'v_and_b32 v{T+3}, 0xffff0000, v{T+3}')
for jj in range(2):
    A = 16 + 4 * jj
    T = 40 + 4 * jj
    a(f's_waitcnt lgkmcnt({1-jj})')
    for r in range(4):
        a(f'v_add_f32 v{A+r}, v{A+r}, v{24+4*jj+r}')
    a(f'v_cvt_pk_bf16_f32 v{A+1}, v{A}, v{A+1}')
    a(f'v_cvt_pk_bf16_f32 v{A+3}, v{A+2}, v{A+3}')
    a(f'v_lshlrev_b32 v{A}, 16, v{A+1}')
    a(f'v_and_b32 v{A+1}, 0xffff0000, v{A+1}')
    a(f'v_lshlrev_b32 v{A+2}, 16, v{A+3}')
    a(f'v_and_b32 v{A+3}, 0xffff0000, v{A+3}')
    for r in range(4):
        a(f'v_add_f32 v{A+r}, v{A+r}, v{T+r}')
    a(f'v_cvt_pk_bf16_f32 v{36+2*jj}, v{A}, v{A+1}')
    a(f'v_cvt_pk_bf16_f32 v{37+2*jj}, v{A+2}, v{A+3}')
    a(f'v_min_u32 v{36+2*jj}, -2, v{36+2*jj}')
    a(f'v_min_u32 v{37+2*jj}, -2, v{37+2*jj}')
    a(f'ds_write_b64 v{15-jj}, v[{36+2*jj}:{37+2*jj}]')
a(f'v_add_u32 v9, {STG}, v3')
a(f's_mul_i32 s68, s52, 12288')
a(f's_add_u32 s68, s68, {WS_YY}')
a('s_waitcnt lgkmcnt(0)')
a('s_barrier')
a('ds_read_b128 v[16:19], v9')
a('s_waitcnt lgkmcnt(0)')
a('buffer_store_dwordx4 v[16:19], v3, s[40:43], s68 offen sc1')
stamp(7)
a('s_cmp_ge_u32 s2, 128')
a('s_cbranch_scc1 TOP8')
a('s_cmp_ge_u32 s38, 9')
a('s_cbranch_scc1 L_IDLE')
a('s_mov_b32 s65, 43691')
a('v_mul_u32_u24 v9, s65, v0')
a('v_lshrrev_b32 v9, 17, v9')
a('v_lshlrev_b32 v11, 2, v9')
a('s_lshl_b32 s64, s2, 4')
a('v_add_u32 v4, s64, v5')
a('s_movk_i32 s65, 1152')
a('v_mul_lo_u32 v7, v4, s65')
a('s_lshl_b32 s65, s38, 7')
a('v_lshl_add_u32 v8, v6, 5, s65')
a('v_add_u32 v7, v7, v8')
a('global_load_dwordx4 v[12:15], v7, s[4:5]')
a('global_load_dwordx4 v[16:19], v7, s[4:5] offset:16')
a('global_load_dwordx4 v[20:23], v8, s[24:25]')
a('global_load_dwordx4 v[24:27], v8, s[24:25] offset:16')
a('v_mul_u32_u24 v10, 3, v9')
a('v_sub_u32 v10, v0, v10')
a('s_movk_i32 s65, 12288')
a('v_mul_lo_u32 v9, v9, s65')
a('v_lshl_add_u32 v9, v10, 4, v9')
a('s_mul_i32 s65, s2, 96')
a(f's_add_u32 s65, s65, {WS_YY}')
a('v_lshrrev_b32 v10, 2, v5')
a('v_lshl_add_u32 v10, v6, 4, v10')
a('v_lshlrev_b32 v10, 5, v10')
a('v_and_b32 v36, 3, v5')
a('v_lshl_add_u32 v10, v36, 3, v10')
a('s_lshl_b32 s66, s38, 11')
a(f'v_add_u32 v10, s66, v10')
a(f's_movk_i32 s66, {WS_YF}')
tag_poll('L_YF', 11, 's66', 28)
a('v_lshlrev_b32 v11, 5, v0')
def yy_loads():
    a('buffer_load_dwordx4 v[28:31], v9, s[40:43], s65 offen sc1')
    a('buffer_load_dwordx4 v[32:35], v9, s[40:43], s65 offen offset:48 sc1')
poll_loop('L_YP', yy_loads, chk8(28, 36, 37))
a('s_mov_b64 exec, -1')
a(f'ds_write_b128 v11, v[28:31] offset:{YT}')
a(f'ds_write_b128 v11, v[32:35] offset:{YT+16}')
H = 40
for i in range(8):
    a(f'v_lshlrev_b32 v{H+2*i}, 16, v{12+i}')
    a(f'v_and_b32 v{H+2*i+1}, 0xffff0000, v{12+i}')
a('v_mul_u32_u24 v11, 80, v5')
a(f'v_add_u32 v11, {M_EX}, v11')
a('s_lshl_b32 s66, s38, 3')
a('v_add_u32 v9, s66, v11')
a('s_waitcnt lgkmcnt(0)')
a('s_barrier')
stamp(8)
for k in range(4):
    a(f'ds_read_b64_tr_b16 v[{28+2*k}:{29+2*k}], v10 offset:{YT+128*k}')
for i in range(8):
    if i % 2 == 0:
        a(f's_waitcnt lgkmcnt({3-i//2})')
    a(f'v_lshlrev_b32 v36, 16, v{28+i}')
    a(f'v_and_b32 v37, 0xffff0000, v{28+i}')
    a(f'v_add_f32 v{H+2*i}, v{H+2*i}, v36')
    a(f'v_add_f32 v{H+2*i+1}, v{H+2*i+1}, v37')
    a(f'v_cvt_pk_bf16_f32 v{12+i}, v{H+2*i}, v{H+2*i+1}')
    a(f'v_lshlrev_b32 v{H+2*i}, 16, v{12+i}')
    a(f'v_and_b32 v{H+2*i+1}, 0xffff0000, v{12+i}')
for i in range(4):
    a(f'v_add_f32 v{28+i}, v{H+i}, v{H+4+i}')
    a(f'v_add_f32 v{32+i}, v{H+8+i}, v{H+12+i}')
for i in range(4):
    a(f'v_add_f32 v{28+i}, v{28+i}, v{32+i}')
a('v_add_f32 v28, v28, v29')
a('v_add_f32 v30, v30, v31')
a('v_add_f32 v28, v28, v30')
reduce_g([28], [30])
a(f'v_mul_f32 v28, {fbits(1.0/64)}, v28')
for i in range(0, 16, 4):
    for r in range(4):
        a(f'v_sub_f32 v{36+r}, v{H+i+r}, v28')
    for r in range(4):
        a(f'v_mul_f32 v{30+r}, v{36+r}, v{36+r}' if i == 0 else f'v_fmac_f32 v{30+r}, v{36+r}, v{36+r}')
a('v_add_f32 v30, v30, v31')
a('v_add_f32 v32, v32, v33')
a('v_add_f32 v29, v30, v32')
reduce_g([29], [30])
a('s_mov_b64 exec, 0xffff')
a('ds_write_b64 v9, v[28:29]')
a('s_mov_b64 exec, -1')
a('v_mul_u32_u24 v9, 48, v5')
a(f'v_add_u32 v9, {M_EX2}, v9')
a('s_lshl_b32 s66, s38, 2')
a('v_add_u32 v10, s66, v9')
a(f's_mov_b32 s65, {WS_Z}')
a('s_waitcnt lgkmcnt(0)')
a('s_barrier')
E = 60
for k in range(4):
    a(f'ds_read_b128 v[{E+4*k}:{E+4*k+3}], v11 offset:{16*k}')
a(f'ds_read_b64 v[{E+16}:{E+17}], v11 offset:64')
a('s_waitcnt lgkmcnt(0)')
a(f'v_add_f32 v28, v{E}, v{E+2}'); a(f'v_add_f32 v29, v{E+4}, v{E+6}')
a(f'v_add_f32 v30, v{E+8}, v{E+10}'); a(f'v_add_f32 v31, v{E+12}, v{E+14}')
a(f'v_add_f32 v32, v{E+1}, v{E+3}'); a(f'v_add_f32 v33, v{E+5}, v{E+7}')
a(f'v_add_f32 v34, v{E+9}, v{E+11}'); a(f'v_add_f32 v35, v{E+13}, v{E+15}')
a('v_add_f32 v28, v28, v29'); a('v_add_f32 v30, v30, v31')
a('v_add_f32 v32, v32, v33'); a('v_add_f32 v34, v34, v35')
a(f'v_add_f32 v28, v28, v{E+16}'); a(f'v_add_f32 v32, v32, v{E+17}')
a('v_add_f32 v28, v28, v30'); a('v_add_f32 v32, v32, v34')
a(f'v_mul_f32 v28, {fbits(1.0/9)}, v28')
for w in range(9):
    a(f'v_sub_f32 v{E+2*w}, v{E+2*w}, v28')
a(f'v_mul_f32 v33, v{E}, v{E}')
a(f'v_mul_f32 v34, v{E+2}, v{E+2}')
a(f'v_mul_f32 v35, v{E+4}, v{E+4}')
for w in range(3, 9):
    a(f'v_fmac_f32 v{33+w%3}, v{E+2*w}, v{E+2*w}')
round_bf16_1(28)
a('v_add_f32 v33, v33, v34')
a('v_add_f32 v33, v33, v35')
a(f'v_mul_f32 v38, {fbits(1.0/576)}, v32')
a(f'v_fmac_f32 v38, {fbits(1.0/9)}, v33')
a('v_mov_b32 v39, v28')
sd_from_var(38)
a('v_rcp_f32 v38, v38')
for i in range(8):
    x0, x1 = 36, 37
    a(f'v_sub_f32 v{x0}, v{H+2*i}, v39')
    a(f'v_sub_f32 v{x1}, v{H+2*i+1}, v39')
    a(f'v_cvt_pk_bf16_f32 v{x1}, v{x0}, v{x1}')
    a(f'v_lshlrev_b32 v{x0}, 16, v{x1}')
    a(f'v_and_b32 v{x1}, 0xffff0000, v{x1}')
    a(f'v_mul_f32 v{x0}, v{x0}, v38')
    a(f'v_mul_f32 v{x1}, v{x1}, v38')
    a(f'v_cvt_pk_bf16_f32 v{28+i}, v{x0}, v{x1}')
    a(f'v_min_u32 v{28+i}, -2, v{28+i}')
    if i == 3:
        a('buffer_store_dwordx4 v[28:31], v7, s[40:43], s65 offen sc1')
a('buffer_store_dwordx4 v[32:35], v7, s[40:43], s65 offen offset:16 sc1')
for i in range(8):
    a(f'v_lshlrev_b32 v{E+2*i}, 16, v{28+i}')
    a(f'v_and_b32 v{E+2*i+1}, 0xffff0000, v{28+i}')
    a(f'v_lshlrev_b32 v36, 16, v{20+i}')
    a(f'v_and_b32 v37, 0xffff0000, v{20+i}')
    if i == 0:
        a(f'v_mul_f32 v38, v{E}, v36')
        a(f'v_mul_f32 v39, v{E+1}, v37')
    else:
        a(f'v_fmac_f32 v38, v{E+2*i}, v36')
        a(f'v_fmac_f32 v39, v{E+2*i+1}, v37')
a('v_add_f32 v38, v38, v39')
reduce_g([38], [39])
a('s_mov_b64 exec, 0xffff')
a('ds_write_b32 v10, v38')
a('s_mov_b64 exec, -1')
a('s_waitcnt lgkmcnt(0)')
a('s_barrier')
a('s_cmp_lg_u32 s38, 0')
a('s_cbranch_scc1 L_OUT')
a('ds_read_b128 v[28:31], v9')
a('ds_read_b128 v[32:35], v9 offset:16')
a('ds_read_b32 v36, v9 offset:32')
a('v_sub_u32 v37, 0x7ff, v4')
a('v_lshlrev_b32 v38, 2, v4')
a(f's_mov_b32 s65, {WS_KEYS}')
a('s_waitcnt lgkmcnt(0)')
a('v_add_f32 v28, v28, v29'); a('v_add_f32 v30, v30, v31'); a('v_add_f32 v32, v32, v33'); a('v_add_f32 v34, v34, v35')
a('v_add_f32 v28, v28, v30'); a('v_add_f32 v32, v32, v34'); a('v_add_f32 v28, v28, v36')
a('v_add_f32 v28, v28, v32')
a('v_cvt_pk_bf16_f32 v28, v28, v28')
a('v_ashrrev_i32 v29, 31, v28')
a('v_or_b32 v29, 0x80000000, v29')
a('v_xor_b32 v28, v28, v29')
a('v_and_b32 v28, 0xffff0000, v28')
a('v_or_b32 v28, v28, v37')
a(f'v_mov_b32_dpp v29, v28 row_shl:1 {DPPM}')
a(f'v_mov_b32_dpp v30, v28 row_shl:2 {DPPM}')
a(f'v_mov_b32_dpp v31, v28 row_shl:3 {DPPM}')
a('s_mov_b64 exec, 0x1111')
a('buffer_store_dwordx4 v[28:31], v38, s[40:43], s65 offen sc1')
a('s_mov_b64 exec, -1')
a('L_OUT:')
for i in range(8):
    a(f'v_add_f32 v36, v{E+2*i}, v{H+2*i}')
    a(f'v_add_f32 v37, v{E+2*i+1}, v{H+2*i+1}')
    a(f'v_cvt_pk_bf16_f32 v{20+i}, v36, v37')
    a(f'v_min_u32 v{12+i}, -2, v{12+i}')
a('s_branch TOP8')
a('L_IDLE:')
for _ in range(3):
    a('s_barrier')
a('s_branch TOP8')
a('FFN0:')
WB = 56
a('s_mul_i32 s54, s53, 18432')
a(f's_add_u32 s54, s54, {WS_PART}')
a('s_movk_i32 s55, 12288')
a('v_and_b32 v5, 15, v0')
a('v_bfe_u32 v6, v0, 4, 2')
a('s_waitcnt lgkmcnt(0)')
a(f'global_load_dword v9, v8, s[36:37] offset:{WS_EPOCH}' + (' sc1' if OPT['epsc'] else ''))
a('s_mov_b32 s40, s36'); a('s_mov_b32 s41, s37')
srd_ws(72, 54, 18432)
a(f'buffer_store_dwordx4 v[{PZ}:{PZ+3}], v3, s[72:75], 0 offen sc1')
a(f'buffer_store_dwordx4 v[{PZ}:{PZ+3}], v3, s[72:75], s55 offen sc1')
a('s_lshl_b32 s68, s53, 2')
a(f's_add_u32 s68, s68, {WS_PF}')
a('s_waitcnt vmcnt(0) lgkmcnt(0)')
a('v_readfirstlane_b32 s39, v9')
a('s_add_u32 s39, s39, 1')
a('s_barrier')
stamp(1)
a('s_cmp_ge_u32 s38, 9')
a('s_cbranch_scc1 N_WD')
a('s_mul_i32 s64, s38, 43')
a('s_lshr_b32 s64, s64, 7')
a('s_mul_i32 s65, s64, 3')
a('s_sub_u32 s65, s38, s65')
a('s_mul_i32 s66, s53, 192')
a('s_lshl_b32 s67, s64, 6')
a('s_add_u32 s66, s66, s67')
a(f's_mul_i32 s67, s65, {192*9216}')
a('s_add_u32 s66, s66, s67')
a('v_and_b32 v7, 7, v5')
a(f's_mov_b32 s67, {8*9216}')
a('v_mul_lo_u32 v8, v6, s67')
a('v_lshl_add_u32 v8, v7, 3, v8')
a('v_add_u32 v8, s66, v8')
a('v_cmp_gt_u32 vcc, 8, v5')
a('v_mov_b32 v10, s28')
a('v_mov_b32 v11, s26')
a('v_cndmask_b32 v10, v10, v11, vcc')
a('v_mov_b32 v11, s29')
a('v_mov_b32 v12, s27')
a('v_cndmask_b32 v11, v11, v12, vcc')
a('v_add_co_u32 v10, vcc, v10, v8')
a('v_addc_co_u32 v11, vcc, 0, v11, vcc')
a('s_movk_i32 s66, 9216')
a(f's_mov_b32 s67, {25*9216}')
for ks in range(6):
    for e in range(8):
        r = WB + 16 * (ks + 1) + 2 * e
        a(f'global_load_dwordx2 v[{r}:{r+1}], v[10:11], off{NT}')
        if not (ks == 5 and e == 7):
            a(f'v_add_co_u32 v10, vcc, {"s66" if e < 7 else "s67"}, v10')
            a('v_addc_co_u32 v11, vcc, 0, v11, vcc')
a('s_mov_b32 s66, 0x05040100')
a('s_mov_b32 s67, 0x07060302')
for ks in range(6):
    a(f's_waitcnt vmcnt({8*(5-ks)})')
    S = WB + 16 * (ks + 1); T = WB + 16 * ks
    for p in range(4):
        for j in range(2):
            lo_, hi_ = S + 4 * p + j, S + 4 * p + 2 + j
            a(f'v_perm_b32 v{T+8*j+p}, v{hi_}, v{lo_}, s66')
            a(f'v_perm_b32 v{T+8*j+4+p}, v{hi_}, v{lo_}, s67')
a('s_branch N_CHECK')
a('N_WD:')
a('s_cmp_lg_u32 s38, 9')
a('s_cbranch_scc1 N_NOPF')
a('v_mov_b32 v8, s39')
a('v_mov_b32 v9, 0')
a('s_mov_b64 exec, 1')
a('buffer_store_dword v8, v9, s[40:43], s68 offen sc1')
a('s_mov_b64 exec, -1')
a('N_NOPF:')
a('v_lshrrev_b32 v7, 3, v1')
a('v_bfe_u32 v10, v1, 1, 2')
a('v_xor_b32 v10, v10, v6')
a('v_and_b32 v11, 1, v1')
a('v_lshl_add_u32 v10, v10, 1, v11')
a('s_movk_i32 s66, 1152')
a('v_mul_lo_u32 v7, v7, s66')
a('v_lshl_add_u32 v7, v10, 4, v7')
a('s_mov_b32 s44, s30'); a('s_mov_b32 s45, s31'); a(f's_mov_b32 s46, {D*F*2}'); a('s_mov_b32 s47, 0x00020000')
a('s_sub_u32 s64, s38, 9')
a(f's_mul_i32 s65, s53, {96*1152}')
a('s_mul_i32 s66, s64, 384')
a('s_add_u32 s65, s65, s66')
a(f's_mul_i32 s66, s64, {3*96*128}')
for cb in range(3):
    for g in range(12):
        a(f's_add_u32 m0, s66, {cb*96*128 + g*1024}')
        a(f's_add_u32 s67, s65, {cb*128 + g*8*1152}')
        a(f'buffer_load_dwordx4 v7, s[44:47], s67 offen{NT} lds')
a('N_CHECK:')
stamp(2)
a('s_cmp_ge_u32 s38, 4')
a('s_cbranch_scc1 TOP8')
a('v_lshlrev_b32 v9, 6, v0')
a(f's_movk_i32 s64, {WS_STATS+4}')
tag_poll('N_STP', 9, 's64', 10)
a('s_lshl_b32 s64, s53, 2')
a('s_add_u32 s64, s64, s38')
a('s_mul_i32 s64, s64, 11520')
a(f's_add_u32 s64, s64, {WS_Z}')
a('v_mov_b32 v9, 0')
a('s_mov_b64 exec, 1')
def zh_ld():
    a('buffer_load_dword v10, v9, s[40:43], s64 offen sc1')
def zh_ck():
    a('v_cmp_eq_u32 vcc, -1, v10')
poll_loop('N_ZH', zh_ld, zh_ck)
a('s_mov_b64 exec, -1')
stamp(4)
a('TOP8:')
stamp(9)
SORT8 = [(0,1),(2,3),(4,5),(6,7),(0,2),(1,3),(4,6),(5,7),(1,2),(5,6),(0,4),(3,7),(1,5),(2,6),(1,4),(3,6),(2,4),(3,5),(3,4)]
def ce(regs, i, j, tmp):
    x, y = regs[i], regs[j]
    t = tmp[0]
    a(f'v_max_u32 v{t}, v{x}, v{y}')
    a(f'v_min_u32 v{y}, v{x}, v{y}')
    regs[i] = t
    tmp[0] = x
def merge_level(regs, alt, dpp, tmp, final=False):
    for i in range(8):
        a(f'v_max_u32_dpp v{alt[i]}, v{regs[7-i]}, v{regs[i]} {dpp} {DPPM}')
    for i in range(8):
        regs[i], alt[i] = alt[i], regs[i]
    if final: return
    for st in (4, 2, 1):
        for i in range(8):
            if i & st == 0:
                ce(regs, i, i + st, tmp)
LV = ['quad_perm:[1,0,3,2]', 'quad_perm:[2,3,0,1]', 'row_half_mirror', 'row_mirror']
K0 = 28
a('v_and_b32 v10, 15, v1')
a('v_lshlrev_b32 v10, 5, v10')
a(f'v_add_u32 v10, {M_TOP}, v10')
a('s_cmp_ge_u32 s38, 4')
a('s_cbranch_scc1 T_S2')
a('v_lshlrev_b32 v9, 5, v0')
a(f's_mov_b32 s65, {WS_KEYS}')
a('v_lshrrev_b32 v11, 4, v0')
a('v_lshlrev_b32 v11, 5, v11')
a(f'v_add_u32 v11, {M_TOP}, v11')
def k_loads():
    a(f'buffer_load_dwordx4 v[{K0}:{K0+3}], v9, s[40:43], s65 offen sc1')
    a(f'buffer_load_dwordx4 v[{K0+4}:{K0+7}], v9, s[40:43], s65 offen offset:16 sc1')
a('s_cmp_ge_u32 s2, 192')
a('s_cselect_b64 exec, -1, 1')
poll2('T_KP', k_loads, chk8(K0, 45, 46), skip='s_cmp_lt_u32 s2, 192')
stamp(10)
regs = list(range(K0, K0 + 8)); alt = list(range(K0 + 8, K0 + 16)); tmp = [K0 + 16]
for i, j in SORT8:
    ce(regs, i, j, tmp)
for dpp in LV:
    merge_level(regs, alt, dpp, tmp)
for i in range(8):
    a(f'v_mov_b32 v{48+i}, v{regs[i]}')
a('s_mov_b32 exec_lo, 0x00010001')
a('s_mov_b32 exec_hi, 0x00010001')
a('ds_write_b128 v11, v[48:51]')
a('ds_write_b128 v11, v[52:55] offset:16')
a('s_mov_b64 exec, -1')
a('s_waitcnt lgkmcnt(0)')
a('T_S2:')
a('s_barrier')
a(f'ds_read_b128 v[{K0}:{K0+3}], v10')
a(f'ds_read_b128 v[{K0+4}:{K0+7}], v10 offset:16')
a('s_waitcnt lgkmcnt(0)')
regs = list(range(K0, K0 + 8)); alt = list(range(K0 + 8, K0 + 16)); tmp = [K0 + 16]
for n, dpp in enumerate(LV):
    merge_level(regs, alt, dpp, tmp, final=(n == 3))
for i in range(8):
    a(f'v_readfirstlane_b32 s{44+i}, v{regs[i]}')
stamp(11)
a('s_cmp_ge_u32 s2, 192')
a('s_cbranch_scc1 FFN1')
a('s_cmp_ge_u32 s2, 144')
a('s_cbranch_scc1 END')
a('s_cmp_ge_u32 s2, 128')
a('s_cbranch_scc1 FINAL')
a('s_cmp_ge_u32 s38, 9')
a('s_cbranch_scc1 END')
a('v_sub_u32 v9, 0x7ff, v4')
a('v_mov_b32 v10, -1')
for i in range(8):
    a(f's_and_b32 s64, s{44+i}, 0x7ff')
    a('v_cmp_eq_u32 vcc, s64, v9')
    a(f'v_cndmask_b32 v10, v10, {i}, vcc')
a('s_mov_b32 s72, s32'); a('s_mov_b32 s73, s33'); a(f's_mov_b32 s74, {XBYTES}'); a('s_mov_b32 s75, 0x00020000')
a('s_movk_i32 s64, 1152')
a('v_mul_lo_u32 v11, v10, s64')
a('v_add_u32 v11, v11, v8')
a(f's_mov_b32 s65, {WS_H}')
OSC = ' sc1' if OPT['outsc'] else ''
a('v_cmp_le_i32 vcc, 0, v10')
a('s_and_saveexec_b64 s[70:71], vcc')
a('s_cbranch_execz O_NOSEL')
a('buffer_store_dwordx4 v[12:15], v11, s[40:43], s65 offen sc1')
a('buffer_store_dwordx4 v[16:19], v11, s[40:43], s65 offen offset:16 sc1')
a('O_NOSEL:')
a('s_xor_b64 exec, exec, s[70:71]')
a(f'buffer_store_dwordx4 v[20:23], v7, s[72:75], 0 offen{OSC}')
a(f'buffer_store_dwordx4 v[24:27], v7, s[72:75], 0 offen offset:16{OSC}')
a('s_mov_b64 exec, -1')
a('s_branch FINAL')
a('FFN1:')
a('v_and_b32 v5, 15, v1')
a('v_lshrrev_b32 v6, 4, v1')
a('s_cmp_ge_u32 s38, 9')
a('s_cbranch_scc1 F_WAITD')
a('v_mov_b32 v7, s44')
for i in range(1, 8):
    m = 0x01010101 << i
    a(f's_mov_b32 s66, 0x{m:08x}')
    a(f's_mov_b32 s67, 0x{m:08x}')
    a(f'v_mov_b32 v8, s{44+i}')
    a(f'v_cndmask_b32 v7, v7, v8, s[66:67]')
a('v_and_b32 v7, 0x7ff, v7')
a('v_sub_u32 v7, 0x7ff, v7')
a('s_movk_i32 s64, 1152')
a('v_mul_lo_u32 v7, v7, s64')
a('v_lshl_add_u32 v7, v6, 4, v7')
a('s_mul_i32 s64, s38, 43')
a('s_lshr_b32 s64, s64, 7')
a('s_mul_i32 s65, s64, 3')
a('s_sub_u32 s65, s38, s65')
a('s_mul_i32 s65, s65, 384')
a(f's_add_u32 s65, s65, {WS_Z}')
ZF = 8
def z_loads():
    for ks in range(6):
        a(f'buffer_load_dwordx4 v[{ZF+4*ks}:{ZF+4*ks+3}], v7, s[40:43], s65 offen offset:{64*ks} sc1')
def z_check():
    a(f'v_max3_u32 v48, v{ZF}, v{ZF+1}, v{ZF+2}')
    a(f'v_max3_u32 v49, v{ZF+3}, v{ZF+4}, v{ZF+5}')
    for r in range(6, 24, 6):
        a(f'v_max3_u32 v48, v48, v{ZF+r}, v{ZF+r+1}')
        a(f'v_max3_u32 v49, v49, v{ZF+r+2}, v{ZF+r+3}')
        a(f'v_max3_u32 v48, v48, v{ZF+r+4}, v{ZF+r+5}')
    a('v_max_u32 v48, v48, v49')
    a('v_cmp_eq_u32 vcc, -1, v48')
poll_loop('F_ZP', z_loads, z_check)
a('s_mov_b64 exec, -1')
GA_ = 32
for ks in range(6):
    for c in range(4):
        W = WB + 16 * ks + 4 * c
        src = f'v[{GA_+4*c}:{GA_+4*c+3}]' if ks else '0'
        a(f'v_mfma_f32_16x16x32_bf16 v[{GA_+4*c}:{GA_+4*c+3}], v[{W}:{W+3}], v[{ZF+4*ks}:{ZF+4*ks+3}], {src}')
a('s_lshl_b32 s66, s38, 11')
a(f's_add_u32 s66, s66, {GP0}')
a('v_lshlrev_b32 v7, 7, v6')
a('v_lshl_add_u32 v7, v5, 4, v7')
a('v_add_u32 v7, s66, v7')
a('s_mov_b32 exec_lo, 0x00ff00ff')
a('s_mov_b32 exec_hi, 0x00ff00ff')
for c in range(4):
    a(f'ds_write_b128 v7, v[{GA_+4*c}:{GA_+4*c+3}] offset:{512*c}')
a('s_mov_b64 exec, -1')
a('F_WAITD:')
a('s_lshr_b32 s64, s38, 2')
a('s_and_b32 s65, s38, 3')
a(f's_mul_i32 s66, s64, {3*2048}')
a('s_lshl_b32 s67, s65, 9')
a('s_add_u32 s66, s66, s67')
a(f's_add_u32 s66, s66, {GP0}')
a('v_and_b32 v8, 7, v1')
a('v_bfe_u32 v9, v1, 3, 2')
a('v_lshrrev_b32 v10, 5, v1')
a('v_lshlrev_b32 v11, 4, v8')
a('v_lshl_add_u32 v11, v9, 2, v11')
a('v_lshl_add_u32 v11, v10, 7, v11')
a('v_add_u32 v11, s66, v11')
a(f'v_mul_u32_u24 v12, {HIDS}, v8')
a('v_lshl_add_u32 v12, v10, 5, v12')
a('v_lshl_add_u32 v12, v9, 3, v12')
a('s_lshl_b32 s66, s64, 6')
a('s_lshl_b32 s67, s65, 1')
a('s_add_u32 s66, s66, s67')
a(f's_add_u32 s66, s66, {HID}')
a('v_add_u32 v12, s66, v12')
a('s_waitcnt vmcnt(0) lgkmcnt(0)')
a('s_barrier')
for kt in range(3):
    a(f'ds_read_b32 v{16+kt}, v11 offset:{kt*2048}')
    a(f'ds_read_b32 v{20+kt}, v11 offset:{kt*2048+256}')
a('v_lshrrev_b32 v13, 2, v5')
a('v_lshl_add_u32 v13, v6, 2, v13')
a('v_bfe_u32 v14, v13, 1, 2')
a('v_lshlrev_b32 v13, 7, v13')
a('v_and_b32 v15, 3, v5')
a('v_lshl_add_u32 v13, v15, 3, v13')
a(f's_mul_i32 s66, s38, {96*128}')
a('v_add_u32 v13, s66, v13')
for t in range(4):
    a(f'v_xor_b32 v15, {t}, v14')
    a(f'v_lshl_add_u32 v{24+t}, v15, 5, v13')
a('v_and_b32 v28, 7, v5')
a(f'v_mul_u32_u24 v28, {HIDS}, v28')
a('v_lshl_add_u32 v28, v6, 3, v28')
a(f'v_add_u32 v28, {HID}, v28')
a('s_waitcnt lgkmcnt(0)')
a('v_add_f32 v16, v16, v17'); a('v_add_f32 v20, v20, v21')
a('v_add_f32 v16, v16, v18'); a('v_add_f32 v20, v20, v22')
a('v_cvt_pk_bf16_f32 v20, v16, v20')
a('v_lshlrev_b32 v16, 16, v20')
a('v_and_b32 v20, 0xffff0000, v20')
a(f'v_mul_f32 v17, {fbits(-LOG2E)}, v16')
a('v_exp_f32 v17, v17')
a('v_add_f32 v17, 1.0, v17')
a('v_rcp_f32 v17, v17')
a('v_mul_f32 v16, v16, v17')
round_bf16_1(16)
a('v_mul_f32 v16, v16, v20')
a('v_cvt_pk_bf16_f32 v16, v16, v16')
a('ds_write_b16 v12, v16')
a('s_cmp_ge_u32 s38, 9')
a('s_cbranch_scc1 F_NOA')
AW = 56
for ks in range(3):
    for t in range(4):
        r = AW + 16 * ks + 4 * t
        a(f'ds_read_b64_tr_b16 v[{r}:{r+1}], v{24+t} offset:{ks*4096}')
        a(f'ds_read_b64_tr_b16 v[{r+2}:{r+3}], v{24+t} offset:{ks*4096+2048}')
a('F_NOA:')
a('s_waitcnt lgkmcnt(0)')
a('s_barrier')
a('s_cmp_ge_u32 s38, 9')
a('s_cbranch_scc1 END')
for ks in range(3):
    a(f'ds_read_b64 v[{8+4*ks}:{9+4*ks}], v28 offset:{64*ks}')
    a(f'ds_read_b64 v[{10+4*ks}:{11+4*ks}], v28 offset:{64*ks+32}')
a('v_and_b32 v20, 7, v5')
a('s_movk_i32 s66, 2304')
a('v_mul_lo_u32 v20, v20, s66')
a('v_lshrrev_b32 v21, 3, v5')
a('v_lshl_add_u32 v20, v21, 6, v20')
a('v_lshl_add_u32 v20, v6, 4, v20')
a('s_mul_i32 s66, s53, 18432')
a('s_lshl_b32 s67, s38, 8')
a('s_add_u32 s66, s66, s67')
a(f's_add_u32 s66, s66, {WS_PART}')
for ks in range(3):
    a(f's_waitcnt lgkmcnt({4-2*ks})')
    for t in range(4):
        r = AW + 16 * ks + 4 * t
        src = f'v[{32+4*t}:{35+4*t}]' if ks else '0'
        a(f'v_mfma_f32_16x16x32_bf16 v[{32+4*t}:{35+4*t}], v[{r}:{r+3}], v[{8+4*ks}:{11+4*ks}], {src}')
for p in range(2):
    for r in range(4):
        a(f'v_mov_b32_dpp v{32+8*p+r}, v{36+8*p+r} row_shr:8 {DPPM}')
    for r in range(4):
        a(f'v_min_u32 v{32+8*p+r}, -2, v{32+8*p+r}')
    a(f'buffer_store_dwordx4 v[{32+8*p}:{35+8*p}], v20, s[40:43], s66 offen offset:{128*p} sc1')
a('s_branch END')
a('FINAL:')
a('s_cmp_ge_u32 s38, 7')
a('s_cbranch_scc1 END')
a('s_mul_i32 s64, s2, 3641')
a('s_lshr_b32 s64, s64, 16')
a('s_mul_i32 s65, s64, 18')
a('s_sub_u32 s65, s2, s65')
a('s_mov_b32 s66, s44')
for i in range(1, 8):
    a(f's_cmp_eq_u32 s64, {i}')
    a(f's_cselect_b32 s66, s{44+i}, s66')
a('s_and_b32 s67, s66, 0x7ff')
a('s_sub_u32 s67, 0x7ff, s67')
a('s_mul_i32 s67, s67, 1152')
a('s_lshl_b32 s68, s65, 6')
a('s_add_u32 s67, s67, s68')
a('s_cmp_eq_u32 s38, 6')
a('s_cbranch_scc1 FN_HZ')
a('v_lshrrev_b32 v4, 3, v0')
a('v_lshlrev_b32 v7, 2, v4')
a('s_movk_i32 s68, 18432')
a('v_mul_lo_u32 v4, v4, s68')
a('v_and_b32 v5, 7, v0')
a('v_lshl_add_u32 v4, v5, 4, v4')
a('s_mul_i32 s68, s64, 2304')
a('s_lshl_b32 s69, s65, 7')
a('s_add_u32 s68, s68, s69')
a(f's_add_u32 s68, s68, {WS_PART}')
a('s_lshl_b32 s69, s38, 7')
a(f's_add_u32 s69, s69, {M_FIN}')
a('v_lshl_add_u32 v6, v5, 4, s69')
a(f's_movk_i32 s69, {WS_PF}')
tag_poll('FN_PF', 7, 's69', 20)
def p_loads():
    a('buffer_load_dwordx4 v[20:23], v4, s[40:43], s68 offen sc1')
a('s_mov_b64 exec, 1')
poll2('FN_PP', p_loads, chk4(20))
reduce_q8([20, 21, 22, 23], [24, 25, 26, 27])
a('s_mov_b64 exec, 0xff')
a('ds_write_b128 v6, v[20:23]')
a('s_mov_b64 exec, -1')
a('s_branch FN_B')
a('FN_HZ:')
a(f's_add_u32 s68, s67, {WS_Z}')
a('s_mul_i32 s69, s64, 1152')
a('s_lshl_b32 s65, s65, 6')
a('s_add_u32 s69, s69, s65')
a(f's_add_u32 s69, s69, {WS_H - 64}')
a('v_mov_b32 v4, s68')
a('v_mov_b32 v5, s69')
a('v_cmp_gt_u32 vcc, 4, v1')
a('v_cndmask_b32 v4, v5, v4, vcc')
a('v_lshl_add_u32 v4, v1, 4, v4')
a('v_lshlrev_b32 v6, 4, v1')
a(f'v_add_u32 v6, {M_FIN+768}, v6')
a('s_mov_b64 exec, 0xff')
def hz_loads():
    a('buffer_load_dwordx4 v[20:23], v4, s[40:43], 0 offen sc1')
poll_loop('FN_HP', hz_loads, chk4(20))
a('s_mov_b64 exec, 0xff')
a('ds_write_b128 v6, v[20:23]')
a('s_mov_b64 exec, -1')
a('FN_B:')
a('s_waitcnt lgkmcnt(0)')
a('s_barrier')
a('s_cmp_lg_u32 s38, 0')
a('s_cbranch_scc1 END')
a('v_and_b32 v4, 31, v1')
a('v_lshlrev_b32 v5, 2, v4')
a(f'v_add_u32 v5, {M_FIN}, v5')
a('v_lshlrev_b32 v6, 1, v4')
a(f'v_add_u32 v7, {M_FIN+768}, v6')
for w in range(6):
    a(f'ds_read_b32 v{8+w}, v5 offset:{128*w}')
a('ds_read_u16 v14, v7')
a('ds_read_u16 v15, v7 offset:64')
a('s_and_b32 s66, s66, 0xffff0000')
a('s_ashr_i32 s68, s66, 31')
a('s_not_b32 s68, s68')
a('s_or_b32 s68, s68, 0x80000000')
a('s_xor_b32 s66, s66, s68')
a('s_and_b32 s66, s66, 0xffff0000')
a('v_mov_b32 v16, s66')
a(f'v_mul_f32 v16, {fbits(-LOG2E)}, v16')
a('v_exp_f32 v16, v16')
a('v_add_f32 v16, 1.0, v16')
a('v_rcp_f32 v16, v16')
round_bf16_1(16)
a('s_mov_b32 s72, s32'); a('s_mov_b32 s73, s33'); a(f's_mov_b32 s74, {XBYTES}'); a('s_mov_b32 s75, 0x00020000')
a('s_waitcnt lgkmcnt(0)')
a('v_add_f32 v8, v8, v9'); a('v_add_f32 v10, v10, v11'); a('v_add_f32 v12, v12, v13')
a('v_add_f32 v8, v8, v10'); a('v_add_f32 v8, v8, v12')
round_bf16_1(8)
a('v_mul_f32 v8, v8, v16')
round_bf16_1(8)
a('v_lshlrev_b32 v14, 16, v14')
a('v_lshlrev_b32 v15, 16, v15')
a('v_add_f32 v8, v8, v14')
round_bf16_1(8)
a('v_add_f32 v8, v8, v15')
a('v_cvt_pk_bf16_f32 v8, v8, v8')
a('s_mov_b32 exec_hi, 0')
a('buffer_store_short v8, v6, s[72:75], s67 offen')
a('s_cmp_lg_u32 s2, 0')
a('s_cbranch_scc1 FN_NOEP')
a('v_mov_b32 v20, s39')
a(f'v_mov_b32 v21, {WS_EPOCH}')
a('s_mov_b64 exec, 1')
a('buffer_store_dword v20, v21, s[40:43], 0 offen sc1')
a('FN_NOEP:')
a('s_mov_b64 exec, -1')
a('END:')
if PROF:
    a(f's_cmp_ge_u32 s2, {NWG}')
    a('s_cbranch_scc1 END2')
    a('s_memrealtime s[100:101]')
    a('s_memtime s[70:71]')
    a(f's_add_u32 s72, s36, {WS_PROF}')
    a('s_addc_u32 s73, s37, 0')
    a(f's_mov_b32 s74, {1<<20}')
    a('s_mov_b32 s75, 0x00020000')
    a('s_mul_i32 s64, s2, 12')
    a('s_add_u32 s64, s64, s38')
    a('s_lshl_b32 s64, s64, 6')
    a('v_mov_b32 v2, s64')
    a('s_mov_b64 exec, 1')
    a('s_waitcnt lgkmcnt(0)')
    for i in range(13):
        a(f'v_mov_b32 v3, s{76+2*i}')
        a(f'buffer_store_dword v3, v2, s[72:75], 0 offen offset:{4*i}')
    a('v_mov_b32 v3, s70')
    a('buffer_store_dword v3, v2, s[72:75], 0 offen offset:56')
    a('buffer_store_dword v163, v2, s[72:75], 0 offen offset:52')
    a('v_mov_b32 v3, s3')
    a('buffer_store_dword v3, v2, s[72:75], 0 offen offset:60')
    a('s_getpc_b64 s[70:71]')
    a(f'PCREF:')
    a(f's_sub_u32 s70, s70, PCREF-{KN}')
    a('s_subb_u32 s71, s71, 0')
    a('v_mov_b32 v4, s70')
    a('v_mov_b32 v5, s71')
    a(f'v_mov_b32 v6, {1<<19}')
    a('buffer_store_dwordx2 v[4:5], v6, s[72:75], 0 offen')
    a('END2:')
a('s_endpgm')
a.check_branches()

ref = open(f'/code/{NAME}.s.ref').read().split('\n')
head = [l for l in ref if l.startswith(';') and '@launch' not in l and 'Override launch' not in l and 'grid=ceil' not in l]
txt = '\n'.join(head) + f'\n; @launch grid=({NWG},1,1) block=(768,1,1) lds={LDS_BYTES}\n'
txt += '.amdgcn_target "amdgcn-amd-amdhsa--gfx950"\n' + a.text()
txt += f'''.section .rodata,"a"
.p2align 6
.amdhsa_kernel {KN}
  .amdhsa_next_free_vgpr 168
  .amdhsa_next_free_sgpr 102
  .amdhsa_accum_offset 168
  .amdhsa_group_segment_fixed_size 0
  .amdhsa_kernarg_size 136
  .amdhsa_user_sgpr_count 2
  .amdhsa_user_sgpr_kernarg_segment_ptr 1
  .amdhsa_system_sgpr_workgroup_id_x 1
.end_amdhsa_kernel
'''
args = [x for x in sys.argv[1:] if not x.startswith('--') and '=' not in x]
path = args[0] if args else f'/code/{NAME}.s'
open(path, 'w').write(txt)
print('wrote', path, len(txt))
```

```python
import sys, struct
from asmlib import Asm

NAME = 'sequential_preLN__ssm_conv_s4__moe_arch_mod__prompt'
L, D, N, F = 2048, 576, 128, 4608
XBYTES = L * D * 2
NWG = 240
PROF = '--prof' in sys.argv
OPT = dict(spin=4000, pre_sleep=2, nt=0, outsc=0, colpos=3, colmod=2, noffn=0, stset=0, epsc=1, dlyc=0, dlyf=0, dlyrt=0, dbg=0)
for arg in sys.argv[1:]:
    if '=' in arg:
        k, v = arg.split('=')
        OPT[k] = int(v)
NT = ' nt' if OPT['nt'] else ''

WS_EPOCH = 0
WS_YF = 1024
WS_PF = 2048
WS_STATS = 4096
WS_KEYS = 32768
WS_H = 49152
WS_YY = 65536
WS_Z = WS_YY + XBYTES
WS_PART = WS_Z + XBYTES
WS_PROF = 64 << 20

RS = 544
KV0 = 3 * 64 * RS
KVS = 3072
U0 = KV0 + 3 * KVS
US = 4608
KHS = 4160
RED = 3 * 4 * KHS
STG = RED + 12 * 2048
YT = 0
GP0 = 110592
HID = GP0 + 9 * 4 * 512
HIDS = 208
MISC = 131072
M_CNT = MISC
M_ZERO = MISC + 16
M_GRAN = MISC + 128
M_EX = MISC + 256
M_EX2 = MISC + 1536
M_TOP = MISC + 2304
M_FIN = MISC + 2816
LDS_BYTES = MISC + 4096

LOG2E = 1.4426950408889634
INV2PI = 0.15915494309189535
DPPM = 'row_mask:0xf bank_mask:0xf'

def fbits(x):
    return '0x%08x' % struct.unpack('<I', struct.pack('<f', x))[0]

def split2(x):
    hi = struct.unpack('<f', struct.pack('<f', x))[0]
    return hi, x - hi

a = Asm()
_st = [0]
def xstamp(setno, i):
    if PROF and OPT['stset'] == setno:
        a(f's_memrealtime s[{76+2*i}:{77+2*i}]')
        a('s_waitcnt lgkmcnt(0)')
def stamp(i):
    if PROF and OPT['stset'] == 0:
        a(f's_memrealtime s[{76+2*i}:{77+2*i}]')
        a('s_waitcnt lgkmcnt(0)')

def sleep(n):
    while n > 0:
        a(f's_sleep {min(n, 127)}'); n -= 127

def srd_ws(s, off_sgpr, size):
    a(f's_add_u32 s{s}, s36, s{off_sgpr}')
    a(f's_addc_u32 s{s+1}, s37, 0')
    a(f's_mov_b32 s{s+2}, {size}')
    a(f's_mov_b32 s{s+3}, 0x00020000')

def allreduce64_add(vs, ts):
    for dpp in ('quad_perm:[1,0,3,2]', 'quad_perm:[2,3,0,1]', 'row_half_mirror', 'row_mirror'):
        for v in vs:
            a(f'v_add_f32_dpp v{v}, v{v}, v{v} {dpp} {DPPM}')
    for sw in ('v_permlane16_swap_b32', 'v_permlane32_swap_b32'):
        for v, t in zip(vs, ts):
            a(f'v_mov_b32 v{t}, v{v}')
        for v, t in zip(vs, ts):
            a(f'{sw} v{v}, v{t}')
        for v, t in zip(vs, ts):
            a(f'v_add_f32 v{v}, v{v}, v{t}')

def reduce_q8(vs, ts):
    for v in vs:
        a(f'v_add_f32_dpp v{v}, v{v}, v{v} row_ror:8 {DPPM}')
    for sw in ('v_permlane16_swap_b32', 'v_permlane32_swap_b32'):
        for v, t in zip(vs, ts):
            a(f'v_mov_b32 v{t}, v{v}')
        for v, t in zip(vs, ts):
            a(f'{sw} v{v}, v{t}')
        for v, t in zip(vs, ts):
            a(f'v_add_f32 v{v}, v{v}, v{t}')

def round_bf16_1(v):
    a(f'v_cvt_pk_bf16_f32 v{v}, v{v}, v{v}')
    a(f'v_lshlrev_b32 v{v}, 16, v{v}')

def sd_from_var(v):
    round_bf16_1(v)
    a(f'v_add_f32 v{v}, {fbits(1e-5)}, v{v}')
    round_bf16_1(v)
    a(f'v_sqrt_f32 v{v}, v{v}')
    round_bf16_1(v)

def cexp(dre, dim, lr2, li, p, t0, t1, t2):
    a(f's_mov_b32 s61, {fbits(float(p))}')
    a(f'v_mul_f32 v{t0}, s61, v{lr2}')
    a(f'v_exp_f32 v{t0}, v{t0}')
    a(f'v_mul_f32 v{t1}, s61, v{li}')
    a(f'v_mul_f32 v{t2}, s62, v{t1}')
    a(f'v_fma_f32 v{dre}, v{t1}, s62, -v{t2}')
    a(f'v_fmac_f32 v{dre}, s63, v{t1}')
    a(f'v_fract_f32 v{t2}, v{t2}')
    a(f'v_add_f32 v{t2}, v{t2}, v{dre}')
    a(f'v_cos_f32 v{dre}, v{t2}')
    a(f'v_sin_f32 v{dim}, v{t2}')
    a(f'v_mul_f32 v{dre}, v{dre}, v{t0}')
    a(f'v_mul_f32 v{dim}, v{dim}, v{t0}')

def cmul(dr, di, ar, ai, br, bi):
    a(f'v_mul_f32 v{dr}, v{ar}, v{br}')
    a(f'v_mul_f32 v{di}, v{ar}, v{bi}')
    a(f'v_fma_f32 v{dr}, -v{ai}, v{bi}, v{dr}')
    a(f'v_fmac_f32 v{di}, v{ai}, v{br}')

def put(row, re, im, tmp, addr, neg=False):
    a(f'v_cvt_pk_bf16_f32 v{tmp}, v{re}, {"-" if neg else ""}v{im}')
    a(f'ds_write_b32 v{addr}, v{tmp} offset:{row*RS}')

def poll_loop(label, loads, check, spin_s='s60'):
    a(f's_movk_i32 {spin_s}, {OPT["spin"]}')
    a(f'{label}:')
    loads()
    a('s_waitcnt vmcnt(0)')
    check()
    a('s_and_b64 exec, exec, vcc')
    a(f's_cbranch_execz {label}_D')
    a(f's_sub_u32 {spin_s}, {spin_s}, 1')
    a(f's_cmp_gt_i32 {spin_s}, 0')
    a('s_sleep 1')
    a(f's_cbranch_scc1 {label}')
    a(f'{label}_D:')

def allreduce32_add(vs, ts):
    for dpp in ('quad_perm:[1,0,3,2]', 'quad_perm:[2,3,0,1]', 'row_half_mirror', 'row_mirror'):
        for v in vs:
            a(f'v_add_f32_dpp v{v}, v{v}, v{v} {dpp} {DPPM}')
    for v, t in zip(vs, ts):
        a(f'v_mov_b32 v{t}, v{v}')
    for v, t in zip(vs, ts):
        a(f'v_permlane16_swap_b32 v{v}, v{t}')
    for v, t in zip(vs, ts):
        a(f'v_add_f32 v{v}, v{v}, v{t}')

def reduce_g(vs, ts):
    for sw in ('v_permlane16_swap_b32', 'v_permlane32_swap_b32'):
        for v, t in zip(vs, ts):
            a(f'v_mov_b32 v{t}, v{v}')
        for v, t in zip(vs, ts):
            a(f'{sw} v{v}, v{t}')
        for v, t in zip(vs, ts):
            a(f'v_add_f32 v{v}, v{v}, v{t}')

def poll2(label, loads, check, full='-1', skip=None):
    a(f's_movk_i32 s60, {OPT["spin"]}')
    if skip:
        a(skip)
        a('s_cselect_b32 s61, 0, 1')
    else:
        a('s_mov_b32 s61, 0')
    a(f'{label}:')
    loads()
    a('s_waitcnt vmcnt(0)')
    check()
    a('s_and_b64 exec, exec, vcc')
    a(f's_cbranch_execz {label}_D')
    a('s_sub_u32 s60, s60, 1')
    a('s_cmp_gt_i32 s60, 0')
    a(f's_sleep {OPT["pre_sleep"]}')
    a(f's_cbranch_scc1 {label}')
    a(f'{label}_D:')
    a(f's_mov_b64 exec, {full}')
    a('s_xor_b32 s61, s61, 1')
    a(f's_cbranch_scc1 {label}')

def tag_poll(label, vaddr, soff, vt):
    def ld():
        a(f'buffer_load_dword v{vt}, v{vaddr}, s[40:43], {soff} offen sc1')
    def ck():
        a(f'v_cmp_ne_u32 vcc, s39, v{vt}')
    poll_loop(label, ld, ck)
    a('s_mov_b64 exec, -1')

def chk4(r, t=28):
    def f():
        a(f'v_max_u32 v{t}, v{r}, v{r+1}')
        a(f'v_max3_u32 v{t}, v{t}, v{r+2}, v{r+3}')
        a(f'v_cmp_eq_u32 vcc, -1, v{t}')
    return f
def chk8(r, t0, t1):
    def f():
        a(f'v_max3_u32 v{t0}, v{r}, v{r+1}, v{r+2}')
        a(f'v_max3_u32 v{t1}, v{r+3}, v{r+4}, v{r+5}')
        a(f'v_max3_u32 v{t0}, v{t0}, v{r+6}, v{r+7}')
        a(f'v_max_u32 v{t0}, v{t0}, v{t1}')
        a(f'v_cmp_eq_u32 vcc, -1, v{t0}')
    return f

KN = NAME + '_kernel'
a('.text'); a(f'.globl {KN}'); a('.p2align 8'); a(f'.type {KN},@function'); a(f'{KN}:')
a(f's_cmp_ge_u32 s2, {NWG}')
a('s_cbranch_scc1 END')
a('s_load_dwordx16 s[4:19], s[0:1], 0')
a('s_load_dwordx16 s[20:35], s[0:1], 64')
a('s_load_dwordx2 s[36:37], s[0:1], 128')
if PROF:
    a('s_memrealtime s[76:77]')
    a('s_memtime s[70:71]')
    a('s_waitcnt lgkmcnt(0)')
    a('v_mov_b32 v163, s70')
    a('s_memrealtime s[70:71]')
    a('s_waitcnt lgkmcnt(0)')
    a('s_mov_b32 s3, s70')
    for i in range(78, 100):
        a(f's_mov_b32 s{i}, 0')
if OPT['dbg']:
    a('s_memrealtime s[96:97]')
    a('s_memtime s[98:99]')
a('v_lshrrev_b32 v2, 6, v0')
a('v_and_b32 v1, 63, v0')
a('v_readfirstlane_b32 s38, v2')
a('v_lshlrev_b32 v3, 4, v0')
a('s_and_b32 s52, s2, 7')
a('s_mul_i32 s52, s52, 24')
a('s_lshr_b32 s53, s2, 3')
a('s_add_u32 s52, s52, s53')
a('s_and_b32 s54, s2, 7')
a('s_mul_i32 s54, s54, 6')
a('s_sub_u32 s53, s53, 24')
a('s_add_u32 s53, s53, s54')
PZ = 164
for r in range(4):
    a(f'v_mov_b32 v{PZ+r}, -1')
    a(f'v_mov_b32 v{8+r}, 0')
a('s_mov_b32 s42, 0x10000000'); a('s_mov_b32 s43, 0x00020000')
a('s_cmp_ge_u32 s2, 192')
a('s_cbranch_scc1 FFN0')
a(f'v_add_u32 v12, {MISC}, v3')
a('v_cmp_gt_u32 vcc, 4, v0')
a('s_and_saveexec_b64 s[70:71], vcc')
a('ds_write_b128 v12, v[8:11]')
a('s_mov_b64 exec, s[70:71]')
a('v_lshrrev_b32 v12, 5, v0')
a(f's_movk_i32 s54, {US}')
a('v_mul_lo_u32 v12, v12, s54')
a('v_and_b32 v13, 31, v0')
a('v_lshl_add_u32 v12, v13, 4, v12')
a(f'v_add_u32 v12, {U0+4096}, v12')
a('v_cmp_gt_u32 vcc, 0x60, v0')
a('s_and_saveexec_b64 s[70:71], vcc')
a('ds_write_b128 v12, v[8:11]')
a('s_mov_b64 exec, s[70:71]')
a('s_lshr_b32 s65, s38, 2')
a('s_mul_i32 s66, s52, 3')
a('s_add_u32 s66, s66, s65')
a('s_and_b32 s67, s38, 1')
a('s_lshl_b32 s67, s67, 6')
a('v_add_u32 v14, s67, v1')
a('s_lshl_b32 s67, s66, 8')
a('v_lshl_add_u32 v15, v14, 1, s67')
a('s_lshl_b32 s67, s66, 1')
a('v_mov_b32 v16, s67')
a('s_lshl_b32 s64, s2, 4')
a('s_lshl_b32 s67, s38, 1')
a('s_add_u32 s64, s64, s67')
a('v_lshrrev_b32 v2, 5, v1')
a('v_add_u32 v2, s64, v2')
a('s_movk_i32 s67, 1152')
a('v_mul_lo_u32 v2, v2, s67')
a('v_lshl_add_u32 v2, v13, 2, v2')
XC = 140
a('v_subrev_u32 v17, 0x100, v0')
a(f's_movk_i32 s67, {4*1152}')
a('v_mul_lo_u32 v17, v17, s67')
a('s_mul_i32 s67, s52, 6')
a('s_and_b32 s67, s67, 0xfffc')
a('v_add_u32 v17, s67, v17')
a('s_lshr_b32 s59, s2, 7')
a('s_lshr_b32 s58, s38, 3')
a('s_or_b32 s59, s59, s58')
a('s_lshl_b32 s57, s2, 6')
a(f's_add_u32 s57, s57, {WS_KEYS}')
a('s_waitcnt lgkmcnt(0)')
a(f'global_load_dword v9, v8, s[36:37] offset:{WS_EPOCH}' + (' sc1' if OPT['epsc'] else ''))
a('s_mov_b32 s40, s36'); a('s_mov_b32 s41, s37')
a('global_load_ushort v30, v16, s[18:19]')
a('global_load_ushort v31, v15, s[6:7]')
a('global_load_ushort v32, v15, s[8:9]')
a('global_load_ushort v33, v15, s[10:11]')
a('global_load_ushort v34, v15, s[12:13]')
a('global_load_ushort v35, v15, s[14:15]')
a('global_load_ushort v36, v15, s[16:17]')
a('global_load_ushort v161, v16, s[20:21]')
XR = 60
a('s_cmp_lg_u32 s59, 0')
a('s_cbranch_scc1 P_NOROW')
for i in range(9):
    a(f'global_load_dword v{XR+i}, v2, s[4:5] offset:{128*i}')
srd_ws(72, 57, 64)
a(f'buffer_store_dwordx4 v[{PZ}:{PZ+3}], v3, s[72:75], 0 offen sc1')
a('P_NOROW:')
xstamp(1, 1)
def col_loads():
    a('s_cmp_lt_u32 s38, 4')
    a('s_cbranch_scc1 P_NOCOL')
    for k in range(4):
        a(f'global_load_dwordx2 v[{XC+2*k}:{XC+2*k+1}], v17, s[4:5] offset:{1152*k}' + ['', ' nt', ' sc1', ' sc0 sc1'][OPT['colmod']])
    a('P_NOCOL:')
if OPT['colpos'] == 0: col_loads()
GA = 150
a('v_and_b32 v18, 0xff, v0')
a('v_lshlrev_b32 v18, 3, v18')
a(f's_mul_i32 s67, s65, {KVS}')
a(f's_add_u32 s67, s67, {KV0}')
a(f's_sub_u32 s68, s67, {17024*4}')
a('v_cmp_gt_u32 vcc, 0x80, v18')
for e in range(0, 12, 2):
    a(f'v_add_u32 v26, {e}, v18')
    a(f'v_add_u32 v27, {e+1}, v18')
    a('v_cvt_f32_u32 v28, v26')
    a('v_cvt_f32_u32 v29, v27')
    a('v_cvt_pk_bf16_f32 v28, v28, v29')
    a('v_lshrrev_b32 v29, 16, v28')
    a('v_and_b32 v28, 0xffff, v28')
    a('v_lshl_add_u32 v28, v28, 2, s68')
    a('v_lshl_add_u32 v29, v29, 2, s68')
    a('v_lshl_add_u32 v26, v26, 2, s67')
    a('v_lshl_add_u32 v27, v27, 2, s67')
    a(f'v_cndmask_b32 v{GA+e}, v28, v26, vcc')
    if e + 1 < 11:
        a(f'v_cndmask_b32 v{GA+e+1}, v29, v27, vcc')
xstamp(1, 2)
a('s_barrier')
xstamp(1, 3)
if PROF and OPT['stset'] == 1:
    a('s_cmp_eq_u32 s59, 0')
    a('s_cbranch_scc1 XS1')
    a('s_waitcnt vmcnt(8)')
    xstamp(1, 4)
    a('s_waitcnt vmcnt(7)')
    xstamp(1, 5)
    a('s_waitcnt vmcnt(4)')
    xstamp(1, 6)
    a('XS1:')
if OPT['colpos'] == 0:
    a('s_cmp_lt_u32 s38, 4')
    a('s_cbranch_scc1 C_W0')
    a('s_waitcnt vmcnt(4) lgkmcnt(0)')
    a('s_branch C_W1')
    a('C_W0:')
a('s_waitcnt vmcnt(0) lgkmcnt(0)')
a('C_W1:')
xstamp(1, 7)
if OPT['colpos'] == 1: col_loads()
a('v_readfirstlane_b32 s39, v9')
a('s_add_u32 s39, s39, 1')
a('s_cmp_lg_u32 s59, 0')
a('s_cbranch_scc1 C_KGEN')
X = 70
for i in range(9):
    a(f'v_lshlrev_b32 v{X+2*i}, 16, v{XR+i}')
    a(f'v_and_b32 v{X+2*i+1}, 0xffff0000, v{XR+i}')
a(f'v_add_f32 v26, v{X}, v{X+1}')
a(f'v_add_f32 v27, v{X+2}, v{X+3}')
for i in range(4, 18, 2):
    a(f'v_add_f32 v26, v26, v{X+i}')
    a(f'v_add_f32 v27, v27, v{X+i+1}')
a('v_add_f32 v26, v26, v27')
allreduce32_add([26], [27])
a(f'v_mul_f32 v26, {fbits(1.0/576)}, v26')
for i in range(0, 18, 2):
    a(f'v_sub_f32 v{X+i}, v{X+i}, v26')
    a(f'v_sub_f32 v{X+i+1}, v{X+i+1}, v26')
    if i == 0:
        a(f'v_mul_f32 v27, v{X}, v{X}')
        a(f'v_mul_f32 v28, v{X+1}, v{X+1}')
    else:
        a(f'v_fmac_f32 v27, v{X+i}, v{X+i}')
        a(f'v_fmac_f32 v28, v{X+i+1}, v{X+i+1}')
a('v_add_f32 v27, v27, v28')
allreduce32_add([27], [28])
a(f'v_mul_f32 v27, {fbits(1.0/576)}, v27')
sd_from_var(27)
a('v_cvt_pk_bf16_f32 v26, v26, v27')
a('s_lshl_b32 s67, s38, 4')
a(f's_add_u32 s67, s67, {M_GRAN}')
a('v_lshrrev_b32 v28, 5, v1')
a('v_lshl_add_u32 v28, v28, 3, s67')
a('v_mov_b32 v27, s39')
a('v_mov_b32 v29, 1')
a(f'v_mov_b32 v37, {M_CNT}')
a('s_mov_b32 exec_lo, 1')
a('s_mov_b32 exec_hi, 1')
a('ds_write_b64 v28, v[26:27]')
a('s_mov_b32 exec_hi, 0')
a('ds_add_rtn_u32 v29, v37, v29')
a('s_mov_b64 exec, -1')
a('v_lshlrev_b32 v28, 4, v1')
a(f'v_add_u32 v37, {M_GRAN}, v28')
a('s_lshl_b32 s68, s2, 7')
a(f's_add_u32 s68, s68, {WS_STATS}')
a('s_waitcnt lgkmcnt(0)')
a('v_readfirstlane_b32 s67, v29')
a('s_cmp_lg_u32 s67, 7')
a('s_cbranch_scc1 C_KGEN')
a('s_mov_b64 exec, 0xff')
a('ds_read_b128 v[40:43], v37')
a('s_waitcnt lgkmcnt(0)')
a('buffer_store_dwordx4 v[40:43], v28, s[40:43], s68 offen sc1')
a('s_mov_b64 exec, -1')
a('C_KGEN:')
sleep(OPT['dlyc'])
if OPT['dlyrt']:
    a('s_memrealtime s[76:77]')
    a('s_waitcnt lgkmcnt(0)')
    a(f's_add_u32 s78, s76, {OPT["dlyrt"]}')
    a('RT_L:')
    a('s_memrealtime s[76:77]')
    a('s_waitcnt lgkmcnt(0)')
    a('s_sub_u32 s79, s78, s76')
    a('s_cmp_gt_i32 s79, 0')
    a('s_cbranch_scc1 RT_L')
stamp(1)
xstamp(1, 8)
if OPT['colpos'] == 2: col_loads()
hi, lo = split2(INV2PI)
a(f's_mov_b32 s62, {fbits(hi)}')
a(f's_mov_b32 s63, {fbits(lo)}')
a(f's_mul_i32 s67, s65, {64*RS}')
a('v_lshl_add_u32 v4, v14, 2, s67')
lh, ll = split2(LOG2E)
a('v_lshlrev_b32 v30, 16, v30')
a(f's_mov_b32 s68, {fbits(lh)}')
a(f's_mov_b32 s69, {fbits(ll)}')
a('v_mul_f32 v20, s68, v30')
a('v_fma_f32 v21, v30, s68, -v20')
a('v_fmac_f32 v21, s69, v30')
a('v_exp_f32 v20, v20')
a(f'v_mul_f32 v21, {fbits(0.6931471805599453)}, v21')
a('v_fma_f32 v20, v20, v21, v20')
round_bf16_1(20)
for r in range(6):
    a(f'v_lshlrev_b32 v{11+r if r < 3 else 8+r+6}, 16, v{31+r}' if False else f'v_lshlrev_b32 v{31+r}, 16, v{31+r}')
a('v_mul_f32 v11, v31, v20')
a('v_mul_f32 v12, v32, v20')
a('v_mul_f32 v13, v33, v20')
a('v_mul_f32 v10, v34, v20')
a('v_mul_f32 v11, s68, v11')
cmul(22, 23, 35, 36, 13, 10)
cexp(24, 25, 11, 12, 128, 30, 31, 32)
if OPT['colpos'] == 3: col_loads()
a('s_bitcmp1_b32 s38, 1')
a('s_cbranch_scc1 C_ROLE1')
cexp(26, 27, 11, 12, 8, 30, 31, 32)
cexp(28, 29, 11, 12, 1024, 30, 31, 32)
cmul(34, 35, 22, 23, 28, 29)
a('v_mov_b32 v36, 1.0')
a('v_mov_b32 v37, 0')
put(48, 36, 37, 40, 4, True)
put(49, 26, 27, 41, 4, True)
put(32, 34, 35, 42, 4)
fr, fi, gr, gi = 26, 27, 36, 37
a('v_mov_b32 v44, v26')
a('v_mov_b32 v45, v27')
ar, ai, br, bi = 34, 35, 38, 39
for j in range(2, 16):
    cmul(gr, gi, fr, fi, 44, 45)
    if j - 1 <= 8:
        cmul(br, bi, ar, ai, 24, 25)
    put(48 + j, gr, gi, 40, 4, True)
    if j - 1 <= 8:
        put(32 + j - 1, br, bi, 41, 4)
        ar, ai, br, bi = br, bi, ar, ai
    fr, fi, gr, gi = gr, gi, fr, fi
a('s_branch C_MFMA')
a('C_ROLE1:')
cexp(26, 27, 11, 12, 1, 30, 31, 32)
cexp(28, 29, 11, 12, 2, 30, 31, 32)
cexp(44, 45, 11, 12, 4, 30, 31, 32)
a('v_mov_b32 v50, v22')
a('v_mov_b32 v51, v23')
for i in range(1, 8):
    cmul(50 + 2 * i, 51 + 2 * i, 48 + 2 * i, 49 + 2 * i, 24, 25)
def row_of(i, e):
    if i < 2: return e + 8 * i
    if i < 4: return 16 + e + 4 * (i - 2)
    return 24 + e + 2 * (i - 4)
for i in range(8):
    put(row_of(i, 0), 50 + 2 * i, 51 + 2 * i, 40 + (i & 1), 4)
for i in range(4, 8):
    cmul(34, 35, 50 + 2 * i, 51 + 2 * i, 44, 45)
    put(row_of(i, 1), 34, 35, 40 + (i & 1), 4)
cur = {i: (50 + 2 * i, 51 + 2 * i) for i in range(4)}
alt = {i: (70 + 2 * i, 71 + 2 * i) for i in range(4)}
for e in range(1, 8):
    for i in range(4):
        if i >= 2 and e > 3: continue
        m = (26, 27) if i < 2 else (28, 29)
        cmul(alt[i][0], alt[i][1], cur[i][0], cur[i][1], m[0], m[1])
    for i in range(4):
        if i >= 2 and e > 3: continue
        put(row_of(i, e), alt[i][0], alt[i][1], 40 + (i & 1), 4)
        cur[i], alt[i] = alt[i], cur[i]
a('C_MFMA:')
a('v_and_b32 v5, 15, v0')
a('v_bfe_u32 v6, v0, 4, 2')
a(f's_movk_i32 s68, {RS}')
a('v_mul_lo_u32 v7, v5, s68')
a('v_lshl_add_u32 v7, v6, 4, v7')
a('v_add_u32 v7, s67, v7')
a('s_and_b32 s69, s38, 3')
a(f's_mul_i32 s68, s69, {16*RS}')
a('v_add_u32 v8, s68, v7')
a(f's_mul_i32 s67, s65, {KVS}')
a(f's_add_u32 s67, s67, {KV0}')
a('s_waitcnt lgkmcnt(0)')
a('s_barrier')
stamp(2)
a('s_cmp_ge_u32 s69, 3')
a('s_cbranch_scc1 C_EXPAND')
for kb in range(8):
    a(f'ds_read_b128 v[{16+8*kb}:{19+8*kb}], v8 offset:{kb*64}')
    a(f'ds_read_b128 v[{20+8*kb}:{23+8*kb}], v7 offset:{48*RS+kb*64}')
for r in range(4):
    a(f'v_mov_b32 v{12+r}, 0')
for kb in range(8):
    a(f's_waitcnt lgkmcnt({14-2*kb})')
    a(f'v_mfma_f32_16x16x32_bf16 v[12:15], v[{16+8*kb}:{19+8*kb}], v[{20+8*kb}:{23+8*kb}], v[12:15]')
a('s_cmp_eq_u32 s69, 1')
a('s_cbranch_scc1 C_T1')
a('s_cmp_eq_u32 s69, 2')
a('s_cbranch_scc1 C_T2')
a('v_and_b32 v9, 1, v6')
a('v_lshlrev_b32 v9, 4, v9')
a('v_lshrrev_b32 v10, 1, v6')
a('v_lshl_add_u32 v9, v10, 9, v9')
a('v_lshl_add_u32 v9, v5, 5, v9')
a('v_add_u32 v9, s67, v9')
a('s_nop 3')
a(f'ds_write_b128 v9, v[12:15]')
a('s_branch C_EXPAND')
a('C_T1:')
a('v_lshlrev_b32 v9, 8, v6')
a('v_add_u32 v9, s67, v9')
a('v_lshl_add_u32 v10, v5, 4, v9')
a('v_lshl_add_u32 v11, v5, 3, v9')
a('v_cmp_gt_u32 vcc, 2, v6')
a('v_cndmask_b32 v9, v11, v10, vcc')
a('v_mov_b32 v10, 0x80')
a('v_cndmask_b32 v10, v10, 8, vcc')
a('v_add_u32 v10, v10, v9')
a(f'ds_write_b64 v9, v[12:13] offset:1024')
a(f'ds_write_b64 v10, v[14:15] offset:1024')
a('s_branch C_EXPAND')
a('C_T2:')
a('v_lshlrev_b32 v9, 8, v6')
a('v_lshl_add_u32 v9, v5, 2, v9')
a('v_add_u32 v9, s67, v9')
a('s_nop 5')
for r in range(4):
    a(f'ds_write_b32 v9, v{12+r} offset:{2048+64*r}')
a('C_EXPAND:')
a('v_and_b32 v9, 0xff, v0')
a(f's_mul_i32 s68, s65, {4*KHS}')
a('v_lshl_add_u32 v9, v9, 4, s68')
a('v_subrev_u32 v17, 0x100, v0')
a('v_lshlrev_b32 v17, 5, v17')
a(f's_movk_i32 s64, {WS_STATS}')
a('s_waitcnt lgkmcnt(0)')
a('s_barrier')
stamp(3)
def expand(ga, addr, off):
    for e in range(11):
        a(f'ds_read_b32 v{20+e}, v{ga+e}')
    a('s_waitcnt lgkmcnt(0)')
    for k in range(4):
        a(f'v_cvt_pk_bf16_f32 v{32+k}, v{20+2*k}, v{21+2*k}')
    a(f'ds_write_b128 v{addr}, v[32:35] offset:{off}')
    for k in range(4):
        a(f'v_cvt_pk_bf16_f32 v{40+k}, v{21+2*k}, v{22+2*k}')
    a(f'ds_write_b128 v{addr}, v[40:43] offset:{off+KHS}')
    for k in range(4):
        a(f'v_cvt_pk_bf16_f32 v{36+k}, v{22+2*k}, v{23+2*k}')
    a(f'ds_write_b128 v{addr}, v[36:39] offset:{off+2*KHS}')
    for k in range(4):
        a(f'v_cvt_pk_bf16_f32 v{44+k}, v{23+2*k}, v{24+2*k}')
    a(f'ds_write_b128 v{addr}, v[44:47] offset:{off+3*KHS}')
expand(GA, 9, 32)
a('s_and_b32 s69, s38, 3')
a('s_cmp_lg_u32 s69, 0')
a('s_cbranch_scc1 C_NOFRONT')
for e in range(11):
    a(f'v_mov_b32 v{GA+e}, {M_ZERO}')
a('s_mov_b64 exec, 2')
for e in range(8, 11):
    a(f'v_mov_b32 v{GA+e}, s67')
    if e > 8:
        a(f'v_add_u32 v{GA+e}, {4*(e-8)}, v{GA+e}')
a('s_mov_b64 exec, 3')
expand(GA, 9, 0)
a('s_mov_b64 exec, -1')
a('C_NOFRONT:')
a('s_cmp_lt_u32 s38, 4')
a('s_cbranch_scc1 C_NOU')
def st_loads():
    a('buffer_load_dwordx4 v[20:23], v17, s[40:43], s64 offen sc1')
    a('buffer_load_dwordx4 v[24:27], v17, s[40:43], s64 offen offset:16 sc1')
def st_check():
    a('v_xor_b32 v28, s39, v21')
    a('v_xor_b32 v29, s39, v23')
    a('v_xor_b32 v30, s39, v25')
    a('v_xor_b32 v31, s39, v27')
    a('v_or3_b32 v28, v28, v29, v30')
    a('v_or_b32 v28, v28, v31')
    a('v_cmp_ne_u32 vcc, 0, v28')
poll_loop('C_STP', st_loads, st_check)
a('s_mov_b64 exec, -1')
stamp(4)
a('s_bitcmp1_b32 s52, 0')
a('s_cselect_b32 s68, 16, 0')
for k in range(4):
    ms = 20 + 2 * k
    a(f'v_alignbit_b32 v{32+k}, v{XC+2*k+1}, v{XC+2*k}, s68')
    a(f'v_lshrrev_b32 v{36+k}, s68, v{XC+2*k+1}')
    a(f'v_and_b32 v{ms+1}, 0xffff0000, v{ms}')
    a(f'v_lshlrev_b32 v{ms}, 16, v{ms}')
    a(f'v_rcp_f32 v{ms+1}, v{ms+1}')
for k in range(4):
    ms = 20 + 2 * k
    a(f'v_lshlrev_b32 v{40+k}, 16, v{32+k}')
    a(f'v_and_b32 v{44+k}, 0xffff0000, v{32+k}')
    a(f'v_lshlrev_b32 v{48+k}, 16, v{36+k}')
    for c in range(3):
        a(f'v_sub_f32 v{40+4*c+k}, v{40+4*c+k}, v{ms}')
for c in range(3):
    for k in range(0, 4, 2):
        r = 40 + 4 * c + k
        a(f'v_cvt_pk_bf16_f32 v{r+1}, v{r}, v{r+1}')
        a(f'v_lshlrev_b32 v{r}, 16, v{r+1}')
        a(f'v_and_b32 v{r+1}, 0xffff0000, v{r+1}')
        a(f'v_mul_f32 v{r}, v{r}, v{21+2*k}')
        a(f'v_mul_f32 v{r+1}, v{r+1}, v{23+2*k}')
a('v_lshrrev_b32 v17, 2, v17')
a(f'v_sub_u32 v17, {U0+4088}, v17')
for c in range(3):
    r = 40 + 4 * c
    a(f'v_cvt_pk_bf16_f32 v{32+2*c}, v{r+3}, v{r+2}')
    a(f'v_cvt_pk_bf16_f32 v{33+2*c}, v{r+1}, v{r}')
    a(f'ds_write_b64 v17, v[{32+2*c}:{33+2*c}] offset:{c*US}')
a('C_NOU:')
a('v_add_u32 v7, 1, v5')
a('v_and_b32 v8, 3, v7')
a('v_sub_u32 v7, v7, v8')
a('v_lshl_add_u32 v7, v6, 3, v7')
a('v_lshlrev_b32 v7, 1, v7')
a(f's_movk_i32 s68, {KHS}')
a('v_mul_lo_u32 v8, v8, s68')
a('v_add_u32 v7, v7, v8')
a('s_and_b32 s69, s38, 1')
a('s_lshl_b32 s69, s69, 8')
a(f's_mul_i32 s68, s65, {4*KHS}')
a('s_add_u32 s68, s68, s69')
a('v_add_u32 v7, s68, v7')
a('v_lshlrev_b32 v8, 5, v5')
a('v_sub_u32 v8, 480, v8')
a('v_lshl_add_u32 v8, v6, 4, v8')
a(f's_mul_i32 s64, s65, {US}')
a(f's_add_u32 s64, s64, {U0}')
a('s_add_u32 s68, s64, s69')
a('v_add_u32 v8, s68, v8')
ACC = 144
for r in range(16):
    a(f'v_mov_b32 v{ACC+r}, 0')
a('s_waitcnt lgkmcnt(0)')
a('s_barrier')
stamp(5)
a(f's_mul_i32 s54, s52, 12288')
a(f's_add_u32 s54, s54, {WS_YY}')
a(f'buffer_store_dwordx4 v[{PZ}:{PZ+3}], v3, s[40:43], s54 offen sc1')
a('s_cmp_ge_u32 s2, 128')
a('s_cbranch_scc1 C_NOZP')
a('s_mul_i32 s56, s2, 18432')
a(f's_add_u32 s56, s56, {WS_Z}')
srd_ws(72, 56, 18432)
a('s_movk_i32 s56, 12288')
a(f'buffer_store_dwordx4 v[{PZ}:{PZ+3}], v3, s[72:75], 0 offen sc1')
a(f'buffer_store_dwordx4 v[{PZ}:{PZ+3}], v3, s[72:75], s56 offen sc1')
a('s_cmp_ge_u32 s2, 8')
a('s_cbranch_scc1 C_NOZP')
a('s_mul_i32 s56, s2, 1152')
a(f's_add_u32 s56, s56, {WS_H}')
srd_ws(72, 56, 1152)
a(f'buffer_store_dwordx4 v[{PZ}:{PZ+3}], v3, s[72:75], 0 offen sc1')
a('C_NOZP:')
FA = [16, 80]; FB = [48, 112]
def conv_body(Js, nq):
    def ld(q, c, st):
        return [f'ds_read_b64 v[{FA[st]+4*q}:{FA[st]+4*q+1}], v7 offset:{512*q+64*c}',
                f'ds_read_b64 v[{FA[st]+4*q+2}:{FA[st]+4*q+3}], v7 offset:{512*q+64*c+8}',
                f'ds_read_b128 v[{FB[st]+4*q}:{FB[st]+4*q+3}], v8 offset:{512*(7-q)+64*c}']
    def mf(qa, dl, st):
        t = Js.index(qa + dl)
        return (f'v_mfma_f32_16x16x32_bf16 v[{ACC+4*t}:{ACC+4*t+3}], v[{FA[st]+4*qa}:{FA[st]+4*qa+3}], '
                f'v[{FB[st]+4*dl}:{FB[st]+4*dl+3}], v[{ACC+4*t}:{ACC+4*t+3}]')
    pairs = sorted([(qa, J - qa) for J in Js for qa in range(J + 1)], key=lambda p: (max(p), p))
    for q in range(nq):
        for x in ld(q, 0, 0): a(x)
    for c in range(4):
        st = c & 1
        nxt = [x for q in range(nq) for x in ld(q, c + 1, st ^ 1)] if c < 3 else []
        lastq = -1
        for n, (qa, dl) in enumerate(pairs):
            if c == 0 and max(qa, dl) != lastq:
                lastq = max(qa, dl)
                a(f's_waitcnt lgkmcnt({min(15, 3*(nq-1-lastq))})')
            a(mf(qa, dl, st))
            if c > 0 or lastq == nq - 1:
                for _ in range(3 if c == 0 else 2):
                    if nxt: a(nxt.pop(0))
        while nxt: a(nxt.pop(0))
        if c < 3:
            a('s_waitcnt lgkmcnt(0)')
a('s_bitcmp1_b32 s38, 1')
a('s_cbranch_scc1 C_JS1')
JSET = [[7, 6, 1, 0], [5, 4, 3, 2]]
conv_body(JSET[0], 8)
a('s_bitcmp1_b32 s38, 0')
a(f's_cselect_b32 s66, {JSET[0][2]}, {JSET[0][0]}')
a(f's_cselect_b32 s67, {JSET[0][3]}, {JSET[0][1]}')
a('s_branch C_RED')
a('C_JS1:')
conv_body(JSET[1], 6)
a('s_bitcmp1_b32 s38, 0')
a(f's_cselect_b32 s66, {JSET[1][2]}, {JSET[1][0]}')
a(f's_cselect_b32 s67, {JSET[1][3]}, {JSET[1][1]}')
a('C_RED:')
stamp(6)
a('s_lshl_b32 s68, s38, 11')
a(f's_add_u32 s68, s68, {RED}')
a('v_lshl_add_u32 v9, v1, 4, s68')
a('s_xor_b32 s68, s68, 2048') if False else None
a('s_xor_b32 s69, s38, 1')
a('s_lshl_b32 s69, s69, 11')
a(f's_add_u32 s69, s69, {RED}')
a('v_lshl_add_u32 v10, v1, 4, s69')
a('s_bitcmp1_b32 s38, 0')
a('s_cbranch_scc1 C_RH1')
a(f'ds_write_b128 v9, v[{ACC+8}:{ACC+11}]')
a(f'ds_write_b128 v9, v[{ACC+12}:{ACC+15}] offset:1024')
for r in range(8):
    a(f'v_mov_b32 v{16+r}, v{ACC+r}')
a('s_branch C_RH2')
a('C_RH1:')
a(f'ds_write_b128 v9, v[{ACC}:{ACC+3}]')
a(f'ds_write_b128 v9, v[{ACC+4}:{ACC+7}] offset:1024')
for r in range(8):
    a(f'v_mov_b32 v{16+r}, v{ACC+8+r}')
a('C_RH2:')
a('v_lshlrev_b32 v11, 5, v5')
a('v_lshl_add_u32 v11, v6, 3, v11')
a('s_add_u32 s64, s64, 4088')
a('s_lshl_b32 s68, s66, 9')
a('s_sub_u32 s68, s64, s68')
a('v_sub_u32 v12, s68, v11')
a('s_lshl_b32 s68, s67, 9')
a('s_sub_u32 s68, s64, s68')
a('v_sub_u32 v13, s68, v11')
a('v_lshrrev_b32 v14, 1, v6')
a('v_lshl_add_u32 v14, v5, 1, v14')
a('v_mul_u32_u24 v14, 48, v14')
a('v_and_b32 v15, 1, v6')
a('v_lshl_add_u32 v14, v15, 3, v14')
a('s_lshl_b32 s68, s65, 4')
a(f's_add_u32 s68, s68, {STG}')
a(f's_mul_i32 s69, s66, {32*48}')
a('s_add_u32 s69, s69, s68')
a('v_add_u32 v15, s69, v14')
a(f's_mul_i32 s69, s67, {32*48}')
a('s_add_u32 s69, s69, s68')
a('v_add_u32 v14, s69, v14')
a('v_lshlrev_b32 v161, 16, v161')
a('ds_read_b64 v[32:33], v12')
a('ds_read_b64 v[34:35], v13')
a('s_waitcnt vmcnt(0) lgkmcnt(0)')
a('s_barrier')
a('s_cmp_lg_u32 s38, 11')
a('s_cbranch_scc1 C_NOYF')
a('s_lshl_b32 s68, s52, 2')
a(f's_add_u32 s68, s68, {WS_YF}')
a('v_mov_b32 v162, s39')
a('v_mov_b32 v160, 0')
a('s_mov_b64 exec, 1')
a('buffer_store_dword v162, v160, s[40:43], s68 offen sc1')
a('s_mov_b64 exec, -1')
a('C_NOYF:')
a('ds_read_b128 v[24:27], v10')
a('ds_read_b128 v[28:31], v10 offset:1024')
for jj in range(2):
    U = 32 + 2 * jj
    T = 40 + 4 * jj
    a(f'v_and_b32 v{T}, 0xffff0000, v{U+1}')
    a(f'v_lshlrev_b32 v{T+1}, 16, v{U+1}')
    a(f'v_and_b32 v{T+2}, 0xffff0000, v{U}')
    a(f'v_lshlrev_b32 v{T+3}, 16, v{U}')
    for r in range(4):
        a(f'v_mul_f32 v{T+r}, v{T+r}, v161')
    a(f'v_cvt_pk_bf16_f32 v{T+1}, v{T}, v{T+1}')
    a(f'v_cvt_pk_bf16_f32 v{T+3}, v{T+2}, v{T+3}')
    a(f'v_lshlrev_b32 v{T}, 16, v{T+1}')
    a(f'v_and_b32 v{T+1}, 0xffff0000, v{T+1}')
    a(f'v_lshlrev_b32 v{T+2}, 16, v{T+3}')
    a(f'v_and_b32 v{T+3}, 0xffff0000, v{T+3}')
for jj in range(2):
    A = 16 + 4 * jj
    T = 40 + 4 * jj
    a(f's_waitcnt lgkmcnt({1-jj})')
    for r in range(4):
        a(f'v_add_f32 v{A+r}, v{A+r}, v{24+4*jj+r}')
    a(f'v_cvt_pk_bf16_f32 v{A+1}, v{A}, v{A+1}')
    a(f'v_cvt_pk_bf16_f32 v{A+3}, v{A+2}, v{A+3}')
    a(f'v_lshlrev_b32 v{A}, 16, v{A+1}')
    a(f'v_and_b32 v{A+1}, 0xffff0000, v{A+1}')
    a(f'v_lshlrev_b32 v{A+2}, 16, v{A+3}')
    a(f'v_and_b32 v{A+3}, 0xffff0000, v{A+3}')
    for r in range(4):
        a(f'v_add_f32 v{A+r}, v{A+r}, v{T+r}')
    a(f'v_cvt_pk_bf16_f32 v{36+2*jj}, v{A}, v{A+1}')
    a(f'v_cvt_pk_bf16_f32 v{37+2*jj}, v{A+2}, v{A+3}')
    a(f'v_min_u32 v{36+2*jj}, -2, v{36+2*jj}')
    a(f'v_min_u32 v{37+2*jj}, -2, v{37+2*jj}')
    a(f'ds_write_b64 v{15-jj}, v[{36+2*jj}:{37+2*jj}]')
a(f'v_add_u32 v9, {STG}, v3')
a(f's_mul_i32 s68, s52, 12288')
a(f's_add_u32 s68, s68, {WS_YY}')
a('s_waitcnt lgkmcnt(0)')
a('s_barrier')
a('ds_read_b128 v[16:19], v9')
a('s_waitcnt lgkmcnt(0)')
a('buffer_store_dwordx4 v[16:19], v3, s[40:43], s68 offen sc1')
stamp(7)
a('s_cmp_ge_u32 s2, 128')
a('s_cbranch_scc1 TOP8')
a('s_cmp_ge_u32 s38, 9')
a('s_cbranch_scc1 L_IDLE')
a('s_mov_b32 s65, 43691')
a('v_mul_u32_u24 v9, s65, v0')
a('v_lshrrev_b32 v9, 17, v9')
a('v_lshlrev_b32 v11, 2, v9')
a('s_lshl_b32 s64, s2, 4')
a('v_add_u32 v4, s64, v5')
a('s_movk_i32 s65, 1152')
a('v_mul_lo_u32 v7, v4, s65')
a('s_lshl_b32 s65, s38, 7')
a('v_lshl_add_u32 v8, v6, 5, s65')
a('v_add_u32 v7, v7, v8')
a('global_load_dwordx4 v[12:15], v7, s[4:5]')
a('global_load_dwordx4 v[16:19], v7, s[4:5] offset:16')
a('global_load_dwordx4 v[20:23], v8, s[24:25]')
a('global_load_dwordx4 v[24:27], v8, s[24:25] offset:16')
a('v_mul_u32_u24 v10, 3, v9')
a('v_sub_u32 v10, v0, v10')
a('s_movk_i32 s65, 12288')
a('v_mul_lo_u32 v9, v9, s65')
a('v_lshl_add_u32 v9, v10, 4, v9')
a('s_mul_i32 s65, s2, 96')
a(f's_add_u32 s65, s65, {WS_YY}')
a('v_lshrrev_b32 v10, 2, v5')
a('v_lshl_add_u32 v10, v6, 4, v10')
a('v_lshlrev_b32 v10, 5, v10')
a('v_and_b32 v36, 3, v5')
a('v_lshl_add_u32 v10, v36, 3, v10')
a('s_lshl_b32 s66, s38, 11')
a(f'v_add_u32 v10, s66, v10')
a(f's_movk_i32 s66, {WS_YF}')
tag_poll('L_YF', 11, 's66', 28)
a('v_lshlrev_b32 v11, 5, v0')
def yy_loads():
    a('buffer_load_dwordx4 v[28:31], v9, s[40:43], s65 offen sc1')
    a('buffer_load_dwordx4 v[32:35], v9, s[40:43], s65 offen offset:48 sc1')
poll_loop('L_YP', yy_loads, chk8(28, 36, 37))
a('s_mov_b64 exec, -1')
a(f'ds_write_b128 v11, v[28:31] offset:{YT}')
a(f'ds_write_b128 v11, v[32:35] offset:{YT+16}')
H = 40
for i in range(8):
    a(f'v_lshlrev_b32 v{H+2*i}, 16, v{12+i}')
    a(f'v_and_b32 v{H+2*i+1}, 0xffff0000, v{12+i}')
a('v_mul_u32_u24 v11, 80, v5')
a(f'v_add_u32 v11, {M_EX}, v11')
a('s_lshl_b32 s66, s38, 3')
a('v_add_u32 v9, s66, v11')
a('s_waitcnt lgkmcnt(0)')
a('s_barrier')
stamp(8)
for k in range(4):
    a(f'ds_read_b64_tr_b16 v[{28+2*k}:{29+2*k}], v10 offset:{YT+128*k}')
for i in range(8):
    if i % 2 == 0:
        a(f's_waitcnt lgkmcnt({3-i//2})')
    a(f'v_lshlrev_b32 v36, 16, v{28+i}')
    a(f'v_and_b32 v37, 0xffff0000, v{28+i}')
    a(f'v_add_f32 v{H+2*i}, v{H+2*i}, v36')
    a(f'v_add_f32 v{H+2*i+1}, v{H+2*i+1}, v37')
    a(f'v_cvt_pk_bf16_f32 v{12+i}, v{H+2*i}, v{H+2*i+1}')
    a(f'v_lshlrev_b32 v{H+2*i}, 16, v{12+i}')
    a(f'v_and_b32 v{H+2*i+1}, 0xffff0000, v{12+i}')
for i in range(4):
    a(f'v_add_f32 v{28+i}, v{H+i}, v{H+4+i}')
    a(f'v_add_f32 v{32+i}, v{H+8+i}, v{H+12+i}')
for i in range(4):
    a(f'v_add_f32 v{28+i}, v{28+i}, v{32+i}')
a('v_add_f32 v28, v28, v29')
a('v_add_f32 v30, v30, v31')
a('v_add_f32 v28, v28, v30')
reduce_g([28], [30])
a(f'v_mul_f32 v28, {fbits(1.0/64)}, v28')
for i in range(0, 16, 4):
    for r in range(4):
        a(f'v_sub_f32 v{36+r}, v{H+i+r}, v28')
    for r in range(4):
        a(f'v_mul_f32 v{30+r}, v{36+r}, v{36+r}' if i == 0 else f'v_fmac_f32 v{30+r}, v{36+r}, v{36+r}')
a('v_add_f32 v30, v30, v31')
a('v_add_f32 v32, v32, v33')
a('v_add_f32 v29, v30, v32')
reduce_g([29], [30])
a('s_mov_b64 exec, 0xffff')
a('ds_write_b64 v9, v[28:29]')
a('s_mov_b64 exec, -1')
a('v_mul_u32_u24 v9, 48, v5')
a(f'v_add_u32 v9, {M_EX2}, v9')
a('s_lshl_b32 s66, s38, 2')
a('v_add_u32 v10, s66, v9')
a(f's_mov_b32 s65, {WS_Z}')
a('s_waitcnt lgkmcnt(0)')
a('s_barrier')
E = 60
for k in range(4):
    a(f'ds_read_b128 v[{E+4*k}:{E+4*k+3}], v11 offset:{16*k}')
a(f'ds_read_b64 v[{E+16}:{E+17}], v11 offset:64')
a('s_waitcnt lgkmcnt(0)')
a(f'v_add_f32 v28, v{E}, v{E+2}'); a(f'v_add_f32 v29, v{E+4}, v{E+6}')
a(f'v_add_f32 v30, v{E+8}, v{E+10}'); a(f'v_add_f32 v31, v{E+12}, v{E+14}')
a(f'v_add_f32 v32, v{E+1}, v{E+3}'); a(f'v_add_f32 v33, v{E+5}, v{E+7}')
a(f'v_add_f32 v34, v{E+9}, v{E+11}'); a(f'v_add_f32 v35, v{E+13}, v{E+15}')
a('v_add_f32 v28, v28, v29'); a('v_add_f32 v30, v30, v31')
a('v_add_f32 v32, v32, v33'); a('v_add_f32 v34, v34, v35')
a(f'v_add_f32 v28, v28, v{E+16}'); a(f'v_add_f32 v32, v32, v{E+17}')
a('v_add_f32 v28, v28, v30'); a('v_add_f32 v32, v32, v34')
a(f'v_mul_f32 v28, {fbits(1.0/9)}, v28')
for w in range(9):
    a(f'v_sub_f32 v{E+2*w}, v{E+2*w}, v28')
a(f'v_mul_f32 v33, v{E}, v{E}')
a(f'v_mul_f32 v34, v{E+2}, v{E+2}')
a(f'v_mul_f32 v35, v{E+4}, v{E+4}')
for w in range(3, 9):
    a(f'v_fmac_f32 v{33+w%3}, v{E+2*w}, v{E+2*w}')
round_bf16_1(28)
a('v_add_f32 v33, v33, v34')
a('v_add_f32 v33, v33, v35')
a(f'v_mul_f32 v38, {fbits(1.0/576)}, v32')
a(f'v_fmac_f32 v38, {fbits(1.0/9)}, v33')
a('v_mov_b32 v39, v28')
sd_from_var(38)
a('v_rcp_f32 v38, v38')
for i in range(8):
    x0, x1 = 36, 37
    a(f'v_sub_f32 v{x0}, v{H+2*i}, v39')
    a(f'v_sub_f32 v{x1}, v{H+2*i+1}, v39')
    a(f'v_cvt_pk_bf16_f32 v{x1}, v{x0}, v{x1}')
    a(f'v_lshlrev_b32 v{x0}, 16, v{x1}')
    a(f'v_and_b32 v{x1}, 0xffff0000, v{x1}')
    a(f'v_mul_f32 v{x0}, v{x0}, v38')
    a(f'v_mul_f32 v{x1}, v{x1}, v38')
    a(f'v_cvt_pk_bf16_f32 v{28+i}, v{x0}, v{x1}')
    a(f'v_min_u32 v{28+i}, -2, v{28+i}')
    if i == 3:
        a('buffer_store_dwordx4 v[28:31], v7, s[40:43], s65 offen sc1')
a('buffer_store_dwordx4 v[32:35], v7, s[40:43], s65 offen offset:16 sc1')
for i in range(8):
    a(f'v_lshlrev_b32 v{E+2*i}, 16, v{28+i}')
    a(f'v_and_b32 v{E+2*i+1}, 0xffff0000, v{28+i}')
    a(f'v_lshlrev_b32 v36, 16, v{20+i}')
    a(f'v_and_b32 v37, 0xffff0000, v{20+i}')
    if i == 0:
        a(f'v_mul_f32 v38, v{E}, v36')
        a(f'v_mul_f32 v39, v{E+1}, v37')
    else:
        a(f'v_fmac_f32 v38, v{E+2*i}, v36')
        a(f'v_fmac_f32 v39, v{E+2*i+1}, v37')
a('v_add_f32 v38, v38, v39')
reduce_g([38], [39])
a('s_mov_b64 exec, 0xffff')
a('ds_write_b32 v10, v38')
a('s_mov_b64 exec, -1')
a('s_waitcnt lgkmcnt(0)')
a('s_barrier')
a('s_cmp_lg_u32 s38, 0')
a('s_cbranch_scc1 L_OUT')
a('ds_read_b128 v[28:31], v9')
a('ds_read_b128 v[32:35], v9 offset:16')
a('ds_read_b32 v36, v9 offset:32')
a('v_sub_u32 v37, 0x7ff, v4')
a('v_lshlrev_b32 v38, 2, v4')
a(f's_mov_b32 s65, {WS_KEYS}')
a('s_waitcnt lgkmcnt(0)')
a('v_add_f32 v28, v28, v29'); a('v_add_f32 v30, v30, v31'); a('v_add_f32 v32, v32, v33'); a('v_add_f32 v34, v34, v35')
a('v_add_f32 v28, v28, v30'); a('v_add_f32 v32, v32, v34'); a('v_add_f32 v28, v28, v36')
a('v_add_f32 v28, v28, v32')
a('v_cvt_pk_bf16_f32 v28, v28, v28')
a('v_ashrrev_i32 v29, 31, v28')
a('v_or_b32 v29, 0x80000000, v29')
a('v_xor_b32 v28, v28, v29')
a('v_and_b32 v28, 0xffff0000, v28')
a('v_or_b32 v28, v28, v37')
a(f'v_mov_b32_dpp v29, v28 row_shl:1 {DPPM}')
a(f'v_mov_b32_dpp v30, v28 row_shl:2 {DPPM}')
a(f'v_mov_b32_dpp v31, v28 row_shl:3 {DPPM}')
a('s_mov_b64 exec, 0x1111')
a('buffer_store_dwordx4 v[28:31], v38, s[40:43], s65 offen sc1')
a('s_mov_b64 exec, -1')
a('L_OUT:')
for i in range(8):
    a(f'v_add_f32 v36, v{E+2*i}, v{H+2*i}')
    a(f'v_add_f32 v37, v{E+2*i+1}, v{H+2*i+1}')
    a(f'v_cvt_pk_bf16_f32 v{20+i}, v36, v37')
    a(f'v_min_u32 v{12+i}, -2, v{12+i}')
a('s_branch TOP8')
a('L_IDLE:')
for _ in range(3):
    a('s_barrier')
a('s_branch TOP8')
a('FFN0:')
WB = 56
a('s_mul_i32 s54, s53, 18432')
a(f's_add_u32 s54, s54, {WS_PART}')
a('s_movk_i32 s55, 12288')
a('v_and_b32 v5, 15, v0')
a('v_bfe_u32 v6, v0, 4, 2')
a('s_waitcnt lgkmcnt(0)')
a(f'global_load_dword v9, v8, s[36:37] offset:{WS_EPOCH}' + (' sc1' if OPT['epsc'] else ''))
a('s_mov_b32 s40, s36'); a('s_mov_b32 s41, s37')
srd_ws(72, 54, 18432)
a(f'buffer_store_dwordx4 v[{PZ}:{PZ+3}], v3, s[72:75], 0 offen sc1')
a(f'buffer_store_dwordx4 v[{PZ}:{PZ+3}], v3, s[72:75], s55 offen sc1')
a('s_lshl_b32 s68, s53, 2')
a(f's_add_u32 s68, s68, {WS_PF}')
a('s_waitcnt vmcnt(0) lgkmcnt(0)')
a('v_readfirstlane_b32 s39, v9')
a('s_add_u32 s39, s39, 1')
a('s_barrier')
sleep(OPT['dlyf'])
stamp(1)
a('s_cmp_ge_u32 s38, 9')
a('s_cbranch_scc1 N_WD')
a('s_mul_i32 s64, s38, 43')
a('s_lshr_b32 s64, s64, 7')
a('s_mul_i32 s65, s64, 3')
a('s_sub_u32 s65, s38, s65')
a('s_mul_i32 s66, s53, 192')
a('s_lshl_b32 s67, s64, 6')
a('s_add_u32 s66, s66, s67')
a(f's_mul_i32 s67, s65, {192*9216}')
a('s_add_u32 s66, s66, s67')
a('v_and_b32 v7, 7, v5')
a(f's_mov_b32 s67, {8*9216}')
a('v_mul_lo_u32 v8, v6, s67')
a('v_lshl_add_u32 v8, v7, 3, v8')
a('v_add_u32 v8, s66, v8')
a('v_cmp_gt_u32 vcc, 8, v5')
a('v_mov_b32 v10, s28')
a('v_mov_b32 v11, s26')
a('v_cndmask_b32 v10, v10, v11, vcc')
a('v_mov_b32 v11, s29')
a('v_mov_b32 v12, s27')
a('v_cndmask_b32 v11, v11, v12, vcc')
a('v_add_co_u32 v10, vcc, v10, v8')
a('v_addc_co_u32 v11, vcc, 0, v11, vcc')
a('s_movk_i32 s66, 9216')
a(f's_mov_b32 s67, {25*9216}')
for ks in range(6):
    for e in range(8):
        r = WB + 16 * (ks + 1) + 2 * e
        a(f'global_load_dwordx2 v[{r}:{r+1}], v[10:11], off{NT}')
        if not (ks == 5 and e == 7):
            a(f'v_add_co_u32 v10, vcc, {"s66" if e < 7 else "s67"}, v10')
            a('v_addc_co_u32 v11, vcc, 0, v11, vcc')
a('s_mov_b32 s66, 0x05040100')
a('s_mov_b32 s67, 0x07060302')
for ks in range(6):
    a(f's_waitcnt vmcnt({8*(5-ks)})')
    S = WB + 16 * (ks + 1); T = WB + 16 * ks
    for p in range(4):
        for j in range(2):
            lo_, hi_ = S + 4 * p + j, S + 4 * p + 2 + j
            a(f'v_perm_b32 v{T+8*j+p}, v{hi_}, v{lo_}, s66')
            a(f'v_perm_b32 v{T+8*j+4+p}, v{hi_}, v{lo_}, s67')
a('s_branch N_CHECK')
a('N_WD:')
a('s_cmp_lg_u32 s38, 9')
a('s_cbranch_scc1 N_NOPF')
a('v_mov_b32 v8, s39')
a('v_mov_b32 v9, 0')
a('s_mov_b64 exec, 1')
a('buffer_store_dword v8, v9, s[40:43], s68 offen sc1')
a('s_mov_b64 exec, -1')
a('N_NOPF:')
a('v_lshrrev_b32 v7, 3, v1')
a('v_bfe_u32 v10, v1, 1, 2')
a('v_xor_b32 v10, v10, v6')
a('v_and_b32 v11, 1, v1')
a('v_lshl_add_u32 v10, v10, 1, v11')
a('s_movk_i32 s66, 1152')
a('v_mul_lo_u32 v7, v7, s66')
a('v_lshl_add_u32 v7, v10, 4, v7')
a('s_mov_b32 s44, s30'); a('s_mov_b32 s45, s31'); a(f's_mov_b32 s46, {D*F*2}'); a('s_mov_b32 s47, 0x00020000')
a('s_sub_u32 s64, s38, 9')
a(f's_mul_i32 s65, s53, {96*1152}')
a('s_mul_i32 s66, s64, 384')
a('s_add_u32 s65, s65, s66')
a(f's_mul_i32 s66, s64, {3*96*128}')
for cb in range(3):
    for g in range(12):
        a(f's_add_u32 m0, s66, {cb*96*128 + g*1024}')
        a(f's_add_u32 s67, s65, {cb*128 + g*8*1152}')
        a(f'buffer_load_dwordx4 v7, s[44:47], s67 offen{NT} lds')
a('N_CHECK:')
stamp(2)
a('s_cmp_ge_u32 s38, 4')
a('s_cbranch_scc1 TOP8')
a('v_lshlrev_b32 v9, 6, v0')
a(f's_movk_i32 s64, {WS_STATS+4}')
tag_poll('N_STP', 9, 's64', 10)
a('s_lshl_b32 s64, s53, 2')
a('s_add_u32 s64, s64, s38')
a('s_mul_i32 s64, s64, 11520')
a(f's_add_u32 s64, s64, {WS_Z}')
a('v_mov_b32 v9, 0')
a('s_mov_b64 exec, 1')
def zh_ld():
    a('buffer_load_dword v10, v9, s[40:43], s64 offen sc1')
def zh_ck():
    a('v_cmp_eq_u32 vcc, -1, v10')
poll_loop('N_ZH', zh_ld, zh_ck)
a('s_mov_b64 exec, -1')
stamp(4)
a('TOP8:')
stamp(9)
SORT8 = [(0,1),(2,3),(4,5),(6,7),(0,2),(1,3),(4,6),(5,7),(1,2),(5,6),(0,4),(3,7),(1,5),(2,6),(1,4),(3,6),(2,4),(3,5),(3,4)]
def ce(regs, i, j, tmp):
    x, y = regs[i], regs[j]
    t = tmp[0]
    a(f'v_max_u32 v{t}, v{x}, v{y}')
    a(f'v_min_u32 v{y}, v{x}, v{y}')
    regs[i] = t
    tmp[0] = x
def merge_level(regs, alt, dpp, tmp, final=False):
    for i in range(8):
        a(f'v_max_u32_dpp v{alt[i]}, v{regs[7-i]}, v{regs[i]} {dpp} {DPPM}')
    for i in range(8):
        regs[i], alt[i] = alt[i], regs[i]
    if final: return
    for st in (4, 2, 1):
        for i in range(8):
            if i & st == 0:
                ce(regs, i, i + st, tmp)
LV = ['quad_perm:[1,0,3,2]', 'quad_perm:[2,3,0,1]', 'row_half_mirror', 'row_mirror']
K0 = 28
a('v_and_b32 v10, 15, v1')
a('v_lshlrev_b32 v10, 5, v10')
a(f'v_add_u32 v10, {M_TOP}, v10')
a('s_cmp_ge_u32 s38, 4')
a('s_cbranch_scc1 T_S2')
a('v_lshlrev_b32 v9, 5, v0')
a(f's_mov_b32 s65, {WS_KEYS}')
a('v_lshrrev_b32 v11, 4, v0')
a('v_lshlrev_b32 v11, 5, v11')
a(f'v_add_u32 v11, {M_TOP}, v11')
def k_loads():
    a(f'buffer_load_dwordx4 v[{K0}:{K0+3}], v9, s[40:43], s65 offen sc1')
    a(f'buffer_load_dwordx4 v[{K0+4}:{K0+7}], v9, s[40:43], s65 offen offset:16 sc1')
a('s_cmp_ge_u32 s2, 192')
a('s_cselect_b64 exec, -1, 1')
poll2('T_KP', k_loads, chk8(K0, 45, 46), skip='s_cmp_lt_u32 s2, 192')
stamp(10)
regs = list(range(K0, K0 + 8)); alt = list(range(K0 + 8, K0 + 16)); tmp = [K0 + 16]
for i, j in SORT8:
    ce(regs, i, j, tmp)
for dpp in LV:
    merge_level(regs, alt, dpp, tmp)
for i in range(8):
    a(f'v_mov_b32 v{48+i}, v{regs[i]}')
a('s_mov_b32 exec_lo, 0x00010001')
a('s_mov_b32 exec_hi, 0x00010001')
a('ds_write_b128 v11, v[48:51]')
a('ds_write_b128 v11, v[52:55] offset:16')
a('s_mov_b64 exec, -1')
a('s_waitcnt lgkmcnt(0)')
a('T_S2:')
a('s_barrier')
a(f'ds_read_b128 v[{K0}:{K0+3}], v10')
a(f'ds_read_b128 v[{K0+4}:{K0+7}], v10 offset:16')
a('s_waitcnt lgkmcnt(0)')
regs = list(range(K0, K0 + 8)); alt = list(range(K0 + 8, K0 + 16)); tmp = [K0 + 16]
for n, dpp in enumerate(LV):
    merge_level(regs, alt, dpp, tmp, final=(n == 3))
for i in range(8):
    a(f'v_readfirstlane_b32 s{44+i}, v{regs[i]}')
stamp(11)
a('s_cmp_ge_u32 s2, 192')
a('s_cbranch_scc1 FFN1')
a('s_cmp_ge_u32 s2, 144')
a('s_cbranch_scc1 END')
a('s_cmp_ge_u32 s2, 128')
a('s_cbranch_scc1 FINAL')
a('s_cmp_ge_u32 s38, 9')
a('s_cbranch_scc1 END')
a('v_sub_u32 v9, 0x7ff, v4')
a('v_mov_b32 v10, -1')
for i in range(8):
    a(f's_and_b32 s64, s{44+i}, 0x7ff')
    a('v_cmp_eq_u32 vcc, s64, v9')
    a(f'v_cndmask_b32 v10, v10, {i}, vcc')
a('s_mov_b32 s72, s32'); a('s_mov_b32 s73, s33'); a(f's_mov_b32 s74, {XBYTES}'); a('s_mov_b32 s75, 0x00020000')
a('s_movk_i32 s64, 1152')
a('v_mul_lo_u32 v11, v10, s64')
a('v_add_u32 v11, v11, v8')
a(f's_mov_b32 s65, {WS_H}')
OSC = ' sc1' if OPT['outsc'] else ''
a('v_cmp_le_i32 vcc, 0, v10')
a('s_and_saveexec_b64 s[70:71], vcc')
a('s_cbranch_execz O_NOSEL')
a('buffer_store_dwordx4 v[12:15], v11, s[40:43], s65 offen sc1')
a('buffer_store_dwordx4 v[16:19], v11, s[40:43], s65 offen offset:16 sc1')
a('O_NOSEL:')
a('s_xor_b64 exec, exec, s[70:71]')
a(f'buffer_store_dwordx4 v[20:23], v7, s[72:75], 0 offen{OSC}')
a(f'buffer_store_dwordx4 v[24:27], v7, s[72:75], 0 offen offset:16{OSC}')
a('s_mov_b64 exec, -1')
a('s_branch FINAL')
a('FFN1:')
a('v_and_b32 v5, 15, v1')
a('v_lshrrev_b32 v6, 4, v1')
a('s_cmp_ge_u32 s38, 9')
a('s_cbranch_scc1 F_WAITD')
a('v_mov_b32 v7, s44')
for i in range(1, 8):
    m = 0x01010101 << i
    a(f's_mov_b32 s66, 0x{m:08x}')
    a(f's_mov_b32 s67, 0x{m:08x}')
    a(f'v_mov_b32 v8, s{44+i}')
    a(f'v_cndmask_b32 v7, v7, v8, s[66:67]')
a('v_and_b32 v7, 0x7ff, v7')
a('v_sub_u32 v7, 0x7ff, v7')
a('s_movk_i32 s64, 1152')
a('v_mul_lo_u32 v7, v7, s64')
a('v_lshl_add_u32 v7, v6, 4, v7')
a('s_mul_i32 s64, s38, 43')
a('s_lshr_b32 s64, s64, 7')
a('s_mul_i32 s65, s64, 3')
a('s_sub_u32 s65, s38, s65')
a('s_mul_i32 s65, s65, 384')
a(f's_add_u32 s65, s65, {WS_Z}')
ZF = 8
def z_loads():
    for ks in range(6):
        a(f'buffer_load_dwordx4 v[{ZF+4*ks}:{ZF+4*ks+3}], v7, s[40:43], s65 offen offset:{64*ks} sc1')
def z_check():
    a(f'v_max3_u32 v48, v{ZF}, v{ZF+1}, v{ZF+2}')
    a(f'v_max3_u32 v49, v{ZF+3}, v{ZF+4}, v{ZF+5}')
    for r in range(6, 24, 6):
        a(f'v_max3_u32 v48, v48, v{ZF+r}, v{ZF+r+1}')
        a(f'v_max3_u32 v49, v49, v{ZF+r+2}, v{ZF+r+3}')
        a(f'v_max3_u32 v48, v48, v{ZF+r+4}, v{ZF+r+5}')
    a('v_max_u32 v48, v48, v49')
    a('v_cmp_eq_u32 vcc, -1, v48')
poll_loop('F_ZP', z_loads, z_check)
a('s_mov_b64 exec, -1')
GA_ = 32
for ks in range(6):
    for c in range(4):
        W = WB + 16 * ks + 4 * c
        src = f'v[{GA_+4*c}:{GA_+4*c+3}]' if ks else '0'
        a(f'v_mfma_f32_16x16x32_bf16 v[{GA_+4*c}:{GA_+4*c+3}], v[{W}:{W+3}], v[{ZF+4*ks}:{ZF+4*ks+3}], {src}')
a('s_lshl_b32 s66, s38, 11')
a(f's_add_u32 s66, s66, {GP0}')
a('v_lshlrev_b32 v7, 7, v6')
a('v_lshl_add_u32 v7, v5, 4, v7')
a('v_add_u32 v7, s66, v7')
a('s_mov_b32 exec_lo, 0x00ff00ff')
a('s_mov_b32 exec_hi, 0x00ff00ff')
for c in range(4):
    a(f'ds_write_b128 v7, v[{GA_+4*c}:{GA_+4*c+3}] offset:{512*c}')
a('s_mov_b64 exec, -1')
a('F_WAITD:')
a('s_lshr_b32 s64, s38, 2')
a('s_and_b32 s65, s38, 3')
a(f's_mul_i32 s66, s64, {3*2048}')
a('s_lshl_b32 s67, s65, 9')
a('s_add_u32 s66, s66, s67')
a(f's_add_u32 s66, s66, {GP0}')
a('v_and_b32 v8, 7, v1')
a('v_bfe_u32 v9, v1, 3, 2')
a('v_lshrrev_b32 v10, 5, v1')
a('v_lshlrev_b32 v11, 4, v8')
a('v_lshl_add_u32 v11, v9, 2, v11')
a('v_lshl_add_u32 v11, v10, 7, v11')
a('v_add_u32 v11, s66, v11')
a(f'v_mul_u32_u24 v12, {HIDS}, v8')
a('v_lshl_add_u32 v12, v10, 5, v12')
a('v_lshl_add_u32 v12, v9, 3, v12')
a('s_lshl_b32 s66, s64, 6')
a('s_lshl_b32 s67, s65, 1')
a('s_add_u32 s66, s66, s67')
a(f's_add_u32 s66, s66, {HID}')
a('v_add_u32 v12, s66, v12')
a('s_waitcnt vmcnt(0) lgkmcnt(0)')
a('s_barrier')
for kt in range(3):
    a(f'ds_read_b32 v{16+kt}, v11 offset:{kt*2048}')
    a(f'ds_read_b32 v{20+kt}, v11 offset:{kt*2048+256}')
a('v_lshrrev_b32 v13, 2, v5')
a('v_lshl_add_u32 v13, v6, 2, v13')
a('v_bfe_u32 v14, v13, 1, 2')
a('v_lshlrev_b32 v13, 7, v13')
a('v_and_b32 v15, 3, v5')
a('v_lshl_add_u32 v13, v15, 3, v13')
a(f's_mul_i32 s66, s38, {96*128}')
a('v_add_u32 v13, s66, v13')
for t in range(4):
    a(f'v_xor_b32 v15, {t}, v14')
    a(f'v_lshl_add_u32 v{24+t}, v15, 5, v13')
a('v_and_b32 v28, 7, v5')
a(f'v_mul_u32_u24 v28, {HIDS}, v28')
a('v_lshl_add_u32 v28, v6, 3, v28')
a(f'v_add_u32 v28, {HID}, v28')
a('s_waitcnt lgkmcnt(0)')
a('v_add_f32 v16, v16, v17'); a('v_add_f32 v20, v20, v21')
a('v_add_f32 v16, v16, v18'); a('v_add_f32 v20, v20, v22')
a('v_cvt_pk_bf16_f32 v20, v16, v20')
a('v_lshlrev_b32 v16, 16, v20')
a('v_and_b32 v20, 0xffff0000, v20')
a(f'v_mul_f32 v17, {fbits(-LOG2E)}, v16')
a('v_exp_f32 v17, v17')
a('v_add_f32 v17, 1.0, v17')
a('v_rcp_f32 v17, v17')
a('v_mul_f32 v16, v16, v17')
round_bf16_1(16)
a('v_mul_f32 v16, v16, v20')
a('v_cvt_pk_bf16_f32 v16, v16, v16')
a('ds_write_b16 v12, v16')
a('s_cmp_ge_u32 s38, 9')
a('s_cbranch_scc1 F_NOA')
AW = 56
for ks in range(3):
    for t in range(4):
        r = AW + 16 * ks + 4 * t
        a(f'ds_read_b64_tr_b16 v[{r}:{r+1}], v{24+t} offset:{ks*4096}')
        a(f'ds_read_b64_tr_b16 v[{r+2}:{r+3}], v{24+t} offset:{ks*4096+2048}')
a('F_NOA:')
a('s_waitcnt lgkmcnt(0)')
a('s_barrier')
a('s_cmp_ge_u32 s38, 9')
a('s_cbranch_scc1 END')
for ks in range(3):
    a(f'ds_read_b64 v[{8+4*ks}:{9+4*ks}], v28 offset:{64*ks}')
    a(f'ds_read_b64 v[{10+4*ks}:{11+4*ks}], v28 offset:{64*ks+32}')
a('v_and_b32 v20, 7, v5')
a('s_movk_i32 s66, 2304')
a('v_mul_lo_u32 v20, v20, s66')
a('v_lshrrev_b32 v21, 3, v5')
a('v_lshl_add_u32 v20, v21, 6, v20')
a('v_lshl_add_u32 v20, v6, 4, v20')
a('s_mul_i32 s66, s53, 18432')
a('s_lshl_b32 s67, s38, 8')
a('s_add_u32 s66, s66, s67')
a(f's_add_u32 s66, s66, {WS_PART}')
for ks in range(3):
    a(f's_waitcnt lgkmcnt({4-2*ks})')
    for t in range(4):
        r = AW + 16 * ks + 4 * t
        src = f'v[{32+4*t}:{35+4*t}]' if ks else '0'
        a(f'v_mfma_f32_16x16x32_bf16 v[{32+4*t}:{35+4*t}], v[{r}:{r+3}], v[{8+4*ks}:{11+4*ks}], {src}')
for p in range(2):
    for r in range(4):
        a(f'v_mov_b32_dpp v{32+8*p+r}, v{36+8*p+r} row_shr:8 {DPPM}')
    for r in range(4):
        a(f'v_min_u32 v{32+8*p+r}, -2, v{32+8*p+r}')
    a(f'buffer_store_dwordx4 v[{32+8*p}:{35+8*p}], v20, s[40:43], s66 offen offset:{128*p} sc1')
a('s_branch END')
a('FINAL:')
a('s_cmp_ge_u32 s38, 7')
a('s_cbranch_scc1 END')
a('s_mul_i32 s64, s2, 3641')
a('s_lshr_b32 s64, s64, 16')
a('s_mul_i32 s65, s64, 18')
a('s_sub_u32 s65, s2, s65')
a('s_mov_b32 s66, s44')
for i in range(1, 8):
    a(f's_cmp_eq_u32 s64, {i}')
    a(f's_cselect_b32 s66, s{44+i}, s66')
a('s_and_b32 s67, s66, 0x7ff')
a('s_sub_u32 s67, 0x7ff, s67')
a('s_mul_i32 s67, s67, 1152')
a('s_lshl_b32 s68, s65, 6')
a('s_add_u32 s67, s67, s68')
a('s_cmp_eq_u32 s38, 6')
a('s_cbranch_scc1 FN_HZ')
a('v_lshrrev_b32 v4, 3, v0')
a('v_lshlrev_b32 v7, 2, v4')
a('s_movk_i32 s68, 18432')
a('v_mul_lo_u32 v4, v4, s68')
a('v_and_b32 v5, 7, v0')
a('v_lshl_add_u32 v4, v5, 4, v4')
a('s_mul_i32 s68, s64, 2304')
a('s_lshl_b32 s69, s65, 7')
a('s_add_u32 s68, s68, s69')
a(f's_add_u32 s68, s68, {WS_PART}')
a('s_lshl_b32 s69, s38, 7')
a(f's_add_u32 s69, s69, {M_FIN}')
a('v_lshl_add_u32 v6, v5, 4, s69')
a(f's_movk_i32 s69, {WS_PF}')
tag_poll('FN_PF', 7, 's69', 20)
def p_loads():
    a('buffer_load_dwordx4 v[20:23], v4, s[40:43], s68 offen sc1')
a('s_mov_b64 exec, 1')
poll2('FN_PP', p_loads, chk4(20))
reduce_q8([20, 21, 22, 23], [24, 25, 26, 27])
a('s_mov_b64 exec, 0xff')
a('ds_write_b128 v6, v[20:23]')
a('s_mov_b64 exec, -1')
a('s_branch FN_B')
a('FN_HZ:')
a(f's_add_u32 s68, s67, {WS_Z}')
a('s_mul_i32 s69, s64, 1152')
a('s_lshl_b32 s65, s65, 6')
a('s_add_u32 s69, s69, s65')
a(f's_add_u32 s69, s69, {WS_H - 64}')
a('v_mov_b32 v4, s68')
a('v_mov_b32 v5, s69')
a('v_cmp_gt_u32 vcc, 4, v1')
a('v_cndmask_b32 v4, v5, v4, vcc')
a('v_lshl_add_u32 v4, v1, 4, v4')
a('v_lshlrev_b32 v6, 4, v1')
a(f'v_add_u32 v6, {M_FIN+768}, v6')
a('s_mov_b64 exec, 0xff')
def hz_loads():
    a('buffer_load_dwordx4 v[20:23], v4, s[40:43], 0 offen sc1')
poll_loop('FN_HP', hz_loads, chk4(20))
a('s_mov_b64 exec, 0xff')
a('ds_write_b128 v6, v[20:23]')
a('s_mov_b64 exec, -1')
a('FN_B:')
a('s_waitcnt lgkmcnt(0)')
a('s_barrier')
a('s_cmp_lg_u32 s38, 0')
a('s_cbranch_scc1 END')
a('v_and_b32 v4, 31, v1')
a('v_lshlrev_b32 v5, 2, v4')
a(f'v_add_u32 v5, {M_FIN}, v5')
a('v_lshlrev_b32 v6, 1, v4')
a(f'v_add_u32 v7, {M_FIN+768}, v6')
for w in range(6):
    a(f'ds_read_b32 v{8+w}, v5 offset:{128*w}')
a('ds_read_u16 v14, v7')
a('ds_read_u16 v15, v7 offset:64')
a('s_and_b32 s66, s66, 0xffff0000')
a('s_ashr_i32 s68, s66, 31')
a('s_not_b32 s68, s68')
a('s_or_b32 s68, s68, 0x80000000')
a('s_xor_b32 s66, s66, s68')
a('s_and_b32 s66, s66, 0xffff0000')
a('v_mov_b32 v16, s66')
a(f'v_mul_f32 v16, {fbits(-LOG2E)}, v16')
a('v_exp_f32 v16, v16')
a('v_add_f32 v16, 1.0, v16')
a('v_rcp_f32 v16, v16')
round_bf16_1(16)
a('s_mov_b32 s72, s32'); a('s_mov_b32 s73, s33'); a(f's_mov_b32 s74, {XBYTES}'); a('s_mov_b32 s75, 0x00020000')
a('s_waitcnt lgkmcnt(0)')
a('v_add_f32 v8, v8, v9'); a('v_add_f32 v10, v10, v11'); a('v_add_f32 v12, v12, v13')
a('v_add_f32 v8, v8, v10'); a('v_add_f32 v8, v8, v12')
round_bf16_1(8)
a('v_mul_f32 v8, v8, v16')
round_bf16_1(8)
a('v_lshlrev_b32 v14, 16, v14')
a('v_lshlrev_b32 v15, 16, v15')
a('v_add_f32 v8, v8, v14')
round_bf16_1(8)
a('v_add_f32 v8, v8, v15')
a('v_cvt_pk_bf16_f32 v8, v8, v8')
a('s_mov_b32 exec_hi, 0')
a('buffer_store_short v8, v6, s[72:75], s67 offen')
a('s_cmp_lg_u32 s2, 0')
a('s_cbranch_scc1 FN_NOEP')
a('v_mov_b32 v20, s39')
a(f'v_mov_b32 v21, {WS_EPOCH}')
a('s_mov_b64 exec, 1')
a('buffer_store_dword v20, v21, s[40:43], 0 offen sc1')
if OPT['dbg']:
    a('s_memrealtime s[92:93]')
    a('s_memtime s[94:95]')
    a('s_waitcnt lgkmcnt(0)')
    a('s_sub_u32 s92, s92, s96')
    a('s_sub_u32 s94, s94, s98')
    a('v_mov_b32 v20, s92')
    a('v_mov_b32 v21, s94')
    a('v_mov_b32 v22, 0')
    a('global_store_dwordx2 v22, v[20:21], s[34:35]')
a('FN_NOEP:')
a('s_mov_b64 exec, -1')
a('END:')
if PROF:
    a(f's_cmp_ge_u32 s2, {NWG}')
    a('s_cbranch_scc1 END2')
    a('s_memrealtime s[100:101]')
    a('s_memtime s[70:71]')
    a(f's_add_u32 s72, s36, {WS_PROF}')
    a('s_addc_u32 s73, s37, 0')
    a(f's_mov_b32 s74, {1<<20}')
    a('s_mov_b32 s75, 0x00020000')
    a('s_mul_i32 s64, s2, 12')
    a('s_add_u32 s64, s64, s38')
    a('s_lshl_b32 s64, s64, 6')
    a('v_mov_b32 v2, s64')
    a('s_mov_b64 exec, 1')
    a('s_waitcnt lgkmcnt(0)')
    for i in range(13):
        a(f'v_mov_b32 v3, s{76+2*i}')
        a(f'buffer_store_dword v3, v2, s[72:75], 0 offen offset:{4*i}')
    a('v_mov_b32 v3, s70')
    a('buffer_store_dword v3, v2, s[72:75], 0 offen offset:56')
    a('buffer_store_dword v163, v2, s[72:75], 0 offen offset:52')
    a('v_mov_b32 v3, s3')
    a('buffer_store_dword v3, v2, s[72:75], 0 offen offset:60')
    a('s_getpc_b64 s[70:71]')
    a(f'PCREF:')
    a(f's_sub_u32 s70, s70, PCREF-{KN}')
    a('s_subb_u32 s71, s71, 0')
    a('v_mov_b32 v4, s70')
    a('v_mov_b32 v5, s71')
    a(f'v_mov_b32 v6, {1<<19}')
    a('buffer_store_dwordx2 v[4:5], v6, s[72:75], 0 offen')
    a('END2:')
a('s_endpgm')
a.check_branches()

ref = open(f'/code/{NAME}.s.ref').read().split('\n')
head = [l for l in ref if l.startswith(';') and '@launch' not in l and 'Override launch' not in l and 'grid=ceil' not in l]
txt = '\n'.join(head) + f'\n; @launch grid=({NWG},1,1) block=(768,1,1) lds={LDS_BYTES}\n'
txt += '.amdgcn_target "amdgcn-amd-amdhsa--gfx950"\n' + a.text()
txt += f'''.section .rodata,"a"
.p2align 6
.amdhsa_kernel {KN}
  .amdhsa_next_free_vgpr 168
  .amdhsa_next_free_sgpr 102
  .amdhsa_accum_offset 168
  .amdhsa_group_segment_fixed_size 0
  .amdhsa_kernarg_size 136
  .amdhsa_user_sgpr_count 2
  .amdhsa_user_sgpr_kernarg_segment_ptr 1
  .amdhsa_system_sgpr_workgroup_id_x 1
.end_amdhsa_kernel
'''
args = [x for x in sys.argv[1:] if not x.startswith('--') and '=' not in x]
path = args[0] if args else f'/code/{NAME}.s'
open(path, 'w').write(txt)
print('wrote', path, len(txt))
```
